```python
import torch

def _softmax(x, axis=-1):
    return torch.softmax(x, dim=axis)
def _gelu(x):
    return torch.nn.functional.gelu(x, approximate="tanh")
def _silu(x):
    return torch.nn.functional.silu(x)
def _sigmoid(x):
    return torch.sigmoid(x)
def _layernorm(x, axis=-1, eps=1e-5):
    m = x.mean(dim=axis, keepdim=True)
    v = x.var(dim=axis, keepdim=True, unbiased=False)
    return (x - m) / torch.sqrt(v + eps)
def _scatter_add(tgt, idx, src, axis=0):
    return tgt.clone().index_add_(axis, idx, src)
def _segment_sum(src, seg, n):
    out = torch.zeros((n,) + src.shape[1:], dtype=src.dtype)
    return out.index_add_(0, seg, src)
def _pad(x, pw):
    flat = tuple(v for pair in reversed(pw) for v in pair)
    return torch.nn.functional.pad(x, flat)

kernel_name = 'parallel_sum__sliding_local_dilated__mixer_channel_mlp__prompt'

def setup_inputs():

    _w = (lambda a: (lambda t: t.to(torch.bfloat16) if t.is_floating_point() else t)(torch.as_tensor(a)))
    def _A_setup():
        B, S, D = 1, 2048, 640
        return {
            "x": _w((lambda *s: torch.randn(*s, dtype=torch.bfloat16) * 0.05)(B, S, D)),
            "wqkv": _w((lambda *s: torch.randn(*s, dtype=torch.bfloat16) * 0.05)(D, 3 * D)),
            "wo": _w((lambda *s: torch.randn(*s, dtype=torch.bfloat16) * 0.05)(D, D)),
        }
    _A_in = _A_setup()

    def _B_setup():
        B, S, D, F = 1, 2048, 640, 1536
        return {
            "x": _w((lambda *s: torch.randn(*s, dtype=torch.bfloat16) * 0.05)(B, S, D)),
            "w1": _w((lambda *s: torch.randn(*s, dtype=torch.bfloat16) * 3.2)(D, F) * (D ** -0.5)),
            "b1": _w((lambda *s: torch.randn(*s, dtype=torch.bfloat16) * 1.6)(F)),
            "w2": _w((lambda *s: torch.randn(*s, dtype=torch.bfloat16) * 0.2)(F, D) * (F ** -0.5)),
            "b2": _w((lambda *s: torch.randn(*s, dtype=torch.bfloat16) * 0.4)(D)),
        }
    _B_in = _B_setup()

    return {
        "A_x": _A_in["x"],
        "A_wqkv": _A_in["wqkv"],
        "A_wo": _A_in["wo"],
        "B_x": _B_in["x"],
        "B_w1": _B_in["w1"],
        "B_b1": _B_in["b1"],
        "B_w2": _B_in["w2"],
        "B_b2": _B_in["b2"],
    }

def reference(A_x, A_wqkv, A_wo, B_x, B_w1, B_b1, B_w2, B_b2):
    def _A_ref(x, wqkv, wo):
        B, S, D = x.shape
        H = 32; Dh = D // H
        W, dil = 8, 2
        qkv = (lambda x, *d: x.permute(*d))((x @ wqkv).reshape(B, S, 3, H, Dh), 2, 0, 3, 1, 4)
        q, k, v = qkv[0], qkv[1], qkv[2]
        scale = Dh ** -0.5
        pos = torch.arange(S)
        off = torch.arange(W) * dil
        idx = pos[:, None] - off[None, :]
        mask = idx >= 0
        idx_c = torch.where(mask, idx, 0).reshape(-1)
        kg = k[:, :, idx_c, :].reshape(B, H, S, W, Dh)
        vg = v[:, :, idx_c, :].reshape(B, H, S, W, Dh)
        logits = torch.einsum("bhsd,bhswd->bhsw", q, kg) * scale
        logits = torch.where(mask[None, None, :, :], logits, -1e9)
        attn = _softmax(logits, axis=-1)
        o = torch.einsum("bhsw,bhswd->bhsd", attn, vg)
        return (lambda x, *d: x.permute(*d))(o, 0, 2, 1, 3).reshape(B, S, D) @ wo

    def _B_ref(x, w1, b1, w2, b2):
        y = _layernorm(x, axis=-1)
        h = _gelu(torch.einsum("bsd,df->bsf", y, w1) + b1)
        return torch.einsum("bsf,fd->bsd", h, w2) + b2

    x = A_x
    xn = _layernorm(x, axis=-1)
    return x + _A_ref(xn, A_wqkv, A_wo) + _B_ref(xn, B_w1, B_b1, B_w2, B_b2)
```

```python
class Asm:
    def __init__(self):
        self.lines = []
        self.vm = []
        self.uid = 0
    def __call__(self, s):
        self.lines.append("    " + s)
    def capture(self):
        self._saved = self.lines; self.lines = []
    def release(self):
        out = [l.strip() for l in self.lines]; self.lines = self._saved
        return out
    def raw(self, s):
        self.lines.append(s)
    def label(self, l):
        self.lines.append(l + ":")
    def comment(self, s):
        self.lines.append("    ; " + s)
    def newlabel(self, p="L"):
        self.uid += 1
        return f"{p}_{self.uid}"
    def vmem(self, s, tag=None):
        import os
        if os.environ.get("NODMA") and s.endswith(" lds"):
            return
        self(s)
        self.vm.append(tag)
    def vm_reset(self):
        self.vm = []
    def vm_wait(self, tags, extra=""):
        if not isinstance(tags, (list, set)):
            tags = [tags]
        last = -1
        for i, t in enumerate(self.vm):
            if t in tags:
                last = i
        if last < 0:
            if extra:
                self(f"s_waitcnt {extra}")
            return
        n = len(self.vm) - 1 - last
        assert n <= 63, n
        self(f"s_waitcnt vmcnt({n}) {extra}".rstrip())
        self.vm = self.vm[last + 1:]
    def stamp(self, i):
        import os
        if os.environ.get("STAMP"):
            self(f"s_memtime s[{80+2*i}:{81+2*i}]")
    def stamp_dump(self, n, vtmp, wg=0, off=0):
        import os
        if not os.environ.get("STAMP"): return
        L = self.newlabel("STD")
        self(f"s_cmp_lg_u32 s2, {wg}")
        self(f"s_cbranch_scc1 {L}")
        self("s_load_dwordx2 s[56:57], s[0:1], 72")
        self("s_waitcnt lgkmcnt(0) vmcnt(0)")
        self("s_mov_b32 s52, s56"); self("s_and_b32 s53, s57, 0xffff"); self("s_mov_b32 s54, 256"); self("s_mov_b32 s55, 0x00020000")
        self(f"v_lshrrev_b32 v{vtmp}, 6, v0")
        self(f"v_lshlrev_b32 v{vtmp}, 5, v{vtmp}")
        for i in range(n):
            self(f"s_sub_u32 s58, s{80+2*i}, s80")
            self(f"v_mov_b32 v{vtmp+1}, s58")
            self(f"buffer_store_dword v{vtmp+1}, v{vtmp}, s[52:55], 0 offen offset:{4*i+off}")
        self.label(L)
    def trace_start(self):
        import os
        if os.environ.get("TRACE"):
            self("s_memrealtime s[96:97]")
    def trace_mark(self, i):
        import os
        if os.environ.get("TRACE"):
            self("s_memrealtime s[100:101]")
            self("s_waitcnt lgkmcnt(0)")
            self(f"s_mov_b32 s{84+i}, s100")
    def trace_end(self, vtmp, slot=0):
        import os
        if not os.environ.get("TRACE"): return
        self("s_waitcnt vmcnt(0)")
        self("s_memrealtime s[98:99]")
        self("s_load_dwordx2 s[56:57], s[0:1], 80")
        self("s_getreg_b32 s58, hwreg(HW_REG_XCC_ID)")
        self("s_getreg_b32 s59, hwreg(HW_REG_HW_ID)")
        self("s_waitcnt lgkmcnt(0)")
        self("s_mov_b32 s52, s56"); self("s_and_b32 s53, s57, 0xffff"); self("s_mov_b32 s54, 0x10000000"); self("s_mov_b32 s55, 0x00020000")
        self(f"v_lshrrev_b32 v{vtmp}, 6, v0")
        self(f"v_lshlrev_b32 v{vtmp}, 4, v{vtmp}")
        self(f"s_lshl_b32 s57, s2, 8")
        self(f"s_add_u32 s57, s57, {0x8000000 + slot*0x100000}")
        self(f"v_add_u32 v{vtmp}, s57, v{vtmp}")
        self(f"v_mov_b32 v{vtmp+2}, s96"); self(f"v_mov_b32 v{vtmp+3}, s98"); self(f"v_mov_b32 v{vtmp+4}, s58"); self(f"v_mov_b32 v{vtmp+5}, s59")
        self(f"buffer_store_dwordx4 v[{vtmp+2}:{vtmp+5}], v{vtmp}, s[52:55], 0 offen")
        self("s_waitcnt vmcnt(0)")
        for q in range(4):
            self(f"v_mov_b32 v{vtmp+2+q}, s{84+q}")
        self(f"buffer_store_dwordx4 v[{vtmp+2}:{vtmp+5}], v{vtmp}, s[52:55], 0 offen offset:128")
    def text(self):
        return "\n".join(self.lines) + "\n"

def vr(b, n=1):
    return f"v{b}" if n == 1 else f"v[{b}:{b+n-1}]"
def ar(b, n=1):
    return f"a{b}" if n == 1 else f"a[{b}:{b+n-1}]"
def sr(b, n=1):
    return f"s{b}" if n == 1 else f"s[{b}:{b+n-1}]"

class RegAlloc:
    def __init__(self, start=0, limit=256):
        self.cur = start; self.limit = limit; self.names = {}
    def alloc(self, n, align=1, name=None):
        self.cur = (self.cur + align - 1) // align * align
        b = self.cur; self.cur += n
        assert self.cur <= self.limit, f"out of registers: {self.cur} > {self.limit} ({name})"
        if name: self.names[name] = (b, n)
        return b
```

```python
import os
from asmlib import *
from gen import srd, swap23, S, D, F, KT, OHP, BIG

NKS = 20
QP = 488

def bf16r(a, d, s):
    a(f"v_cvt_pk_bf16_f32 v{d}, v{s}, v{s}")
    a(f"v_lshlrev_b32 v{d}, 16, v{d}")

def interleave(a, mf, side):
    n = len(mf); k = len(side); si = 0
    for i, m in enumerate(mf):
        a(m)
        tgt = (k * (i + 1) + n - 1) // n
        while si < min(tgt, k):
            a(side[si]); si += 1

def store_tile(a, t, lds_base, rowb, scol, regs, pitch):
    t0, t1, t2, t3, t4, t5, t6, t7 = t
    cpr = rowb // 16
    n = 128 * cpr
    it = (n + 511) // 512
    magic = (65536 + cpr - 1) // cpr
    a(f"s_movk_i32 s51, {OHP}")
    for i in range(it):
        a(f"v_add_u32 v{t0}, {512*i}, v0")
        a(f"v_mul_u32_u24 v{t1}, {magic}, v{t0}")
        a(f"v_lshrrev_b32 v{t1}, 16, v{t1}")
        a(f"v_mul_u32_u24 v{t2}, {cpr}, v{t1}")
        a(f"v_sub_u32 v{t2}, v{t0}, v{t2}")
        a(f"v_mul_u32_u24 v{t3}, {pitch}, v{t1}")
        a(f"v_lshl_add_u32 v{t3}, v{t2}, 4, v{t3}")
        if lds_base > 60000:
            a(f"v_add_u32 v{t3}, {lds_base}, v{t3}")
            a(f"ds_read_b128 {vr(regs+4*i,4)}, v{t3}")
        else:
            a(f"ds_read_b128 {vr(regs+4*i,4)}, v{t3} offset:{lds_base}")
        a(f"v_add_u32 v{t1}, s40, v{t1}")
        a(f"v_mul_lo_u32 v{t1}, v{t1}, s51")
        a(f"v_lshl_add_u32 v{regs+4*it+i}, v{t2}, 4, v{t1}")
        if 512 * (i + 1) > n:
            a(f"v_mov_b32 v{t4}, {BIG}")
            a(f"v_cmp_gt_u32 vcc, {n}, v{t0}")
            a("s_nop 1")
            a(f"v_cndmask_b32 v{regs+4*it+i}, v{t4}, v{regs+4*it+i}, vcc")
    for i in range(it):
        a(f"s_waitcnt lgkmcnt({it-1-i})")
        a(f"buffer_store_dwordx4 {vr(regs+4*i,4)}, v{regs+4*it+i}, s[20:23], s{scol} offen {os.environ.get('STFLAG','')}")

def gen_k1(a):
    a.vm_reset()
    a.raw(".globl k1_kernel\n.p2align 8\n.type k1_kernel,@function\nk1_kernel:")
    a("s_cmp_ge_u32 s2, 256")
    a("s_cbranch_scc1 K1_END")
    a.stamp(0)
    a.trace_start()
    a("s_load_dwordx4 s[4:7], s[0:1], 0")
    a("s_load_dwordx4 s[28:31], s[0:1], 32")
    a("s_load_dwordx2 s[34:35], s[0:1], 80")
    a("s_load_dwordx2 s[74:75], s[0:1], 16")
    a("s_load_dwordx2 s[76:77], s[0:1], 48")
    a("s_and_b32 s38, s2, 7")
    a("s_lshr_b32 s37, s2, 3")
    a("s_and_b32 s36, s37, 1")
    a("s_lshr_b32 s37, s37, 1")
    a("s_lshl_b32 s40, s37, 7")
    a("v_lshrrev_b32 v4, 6, v0")
    a("v_and_b32 v1, 63, v0")
    a("v_readfirstlane_b32 s39, v4")
    a("v_and_b32 v2, 15, v1")
    a("v_lshrrev_b32 v3, 4, v1")
    a("s_lshr_b32 s43, s39, 2")
    a("s_and_b32 s44, s39, 3")
    a("s_lshl_b32 s45, s39, 10")
    if os.environ.get("CODEPF"):
        a("s_getpc_b64 s[46:47]")
        a.label("K1_PC")
        a("s_sub_u32 s46, s46, K1_PC-k1_kernel")
        a("s_subb_u32 s47, s47, 0")
        a("v_lshlrev_b32 v4, 7, v0")
        a("v_min_u32 v5, K1_END-k1_kernel, v4")
        a("global_load_dword v243, v5, s[46:47]")
        a("v_add_u32 v4, 65536, v4")
        a("v_min_u32 v5, K1_END-k1_kernel, v4")
        a("global_load_dword v243, v5, s[46:47]")
    if os.environ.get("PRIO"):
        a("s_cmp_lt_u32 s39, 4")
        a("s_cbranch_scc1 K1_NOPRIO")
        a(f"s_setprio {os.environ.get('PRIO')}")
        a.label("K1_NOPRIO")
    a("s_cmp_eq_u32 s36, 1")
    a("s_cbranch_scc1 K1_MLP")
    nv1, l1 = body(a, True)
    a("s_branch K1_END")
    a.label("K1_MLP")
    nv2, l2 = body(a, False)
    a.label("K1_END")
    a("s_endpgm")
    return max(nv1, nv2, 244 if os.environ.get('CODEPF') else 0), max(l1, l2)

def body(a, attn):
    a.vm_reset()
    P = "A" if attn else "M"
    NJW = 4 if attn else 3
    WP = 480 if attn else 384
    WG_P = 3840 if attn else 3072
    NWI = 15 if attn else 12
    NAI = 9 if attn else 8
    AROWS = 144 if attn else 128
    HOFF = 16 if attn else 0
    NW = 5 if attn else 7
    NA = 4
    AD = 2 * (NA - 1)
    WSTG = 32 * WP
    ASTG = AROWS * 128
    ARING = 0
    WRING = NA * ASTG
    DUMMY = WRING + NW * WSTG
    LDS_TOTAL = DUMMY
    assert LDS_TOTAL <= 163840, LDS_TOTAL

    R = RegAlloc(4, 256)
    v_lane, v_m, v_g = 1, 2, 3
    t = [R.alloc(1) for _ in range(8)]
    t0, t1, t2, t3, t4, t5, t6, t7 = t
    v_doff = R.alloc(5)
    v_aa = R.alloc(8)
    v_ha = R.alloc(2)
    v_wa = R.alloc(8)
    SLO = (65535 - 8 * WP) // WSTG + 1
    v_st = R.alloc(16, 4)
    v_ones = R.alloc(4, 4)
    v_b1 = R.alloc(6, 2)
    acc = R.alloc(16 * NJW, 4)
    acch = R.alloc(4 * (2 if attn else 3), 4)
    NAF = 5 if attn else 4
    Af = R.alloc(2 * 4 * NAF, 4)
    Wf = R.alloc(2 * 4 * NJW, 4)

    a("s_mul_i32 s42, s38, %d" % (160 if attn else 384))
    a("s_movk_i32 s41, 1280")
    for i in range(3):
        a(f"s_add_u32 s46, s39, {8*i}")
        if 8 * i < NWI:
            a(f"s_lshl_b32 s47, s46, 6")
            a(f"v_add_u32 v{t0}, s47, v{v_lane}")
            if attn:
                a(f"v_mul_u32_u24 v{t1}, 2185, v{t0}")
                a(f"v_lshrrev_b32 v{t1}, 16, v{t1}")
                a(f"v_mul_u32_u24 v{t2}, 30, v{t1}")
                a(f"v_sub_u32 v{t0}, v{t0}, v{t2}")
                a(f"v_mul_u32_u24 v{t2}, 205, v{t0}")
                a(f"v_lshrrev_b32 v{t2}, 11, v{t2}")
                a(f"v_mul_u32_u24 v{t3}, 10, v{t2}")
                a(f"v_sub_u32 v{t0}, v{t0}, v{t3}")
                a(f"v_mul_u32_u24 v{t2}, 1280, v{t2}")
                a(f"v_lshl_add_u32 v{t0}, v{t0}, 4, v{t2}")
            else:
                a(f"v_mul_u32_u24 v{t1}, 2731, v{t0}")
                a(f"v_lshrrev_b32 v{t1}, 16, v{t1}")
                a(f"v_mul_u32_u24 v{t2}, 24, v{t1}")
                a(f"v_sub_u32 v{t0}, v{t0}, v{t2}")
                a(f"v_bfe_u32 v{t2}, v{t1}, 1, 2")
                a(f"v_lshlrev_b32 v{t2}, 1, v{t2}")
                a(f"v_xor_b32 v{t0}, v{t0}, v{t2}")
                a(f"v_lshlrev_b32 v{t0}, 4, v{t0}")
            swap23(a, t2, t1, t3)
            a(f"v_mul_u32_u24 v{t2}, {WG_P}, v{t2}")
            a(f"v_add3_u32 v{t4}, v{t2}, v{t0}, s42")
        if 8 * i + 7 >= NWI:
            a(f"s_sub_u32 s47, s46, {NWI}")
            a(f"s_lshl_b32 s47, s47, 3")
            a(f"v_lshrrev_b32 v{t0}, 3, v{v_lane}")
            a(f"v_add_u32 v{t0}, s47, v{t0}")
            a(f"v_and_b32 v{t1}, 7, v{v_lane}")
            a(f"v_and_b32 v{t2}, 7, v{t0}")
            a(f"v_xor_b32 v{t1}, v{t1}, v{t2}")
            a(f"s_sub_u32 s47, s40, {HOFF}")
            a(f"v_add_u32 v{t0}, s47, v{t0}")
            a(f"v_mul_lo_u32 v{t0}, v{t0}, s41")
            a(f"v_lshl_add_u32 v{t5}, v{t1}, 4, v{t0}")
        if 8 * i + 7 < NWI:
            a(f"v_mov_b32 v{v_doff+i}, v{t4}")
        elif 8 * i >= NWI:
            if 8 * i + 7 >= NWI + NAI:
                a(f"s_cmp_lt_u32 s46, {NWI+NAI}")
                a(f"s_cselect_b64 vcc, -1, 0")
                a(f"v_mov_b32 v{t0}, {BIG}")
                a(f"v_cndmask_b32 v{v_doff+i}, v{t0}, v{t5}, vcc")
            else:
                a(f"v_mov_b32 v{v_doff+i}, v{t5}")
        else:
            a(f"s_cmp_lt_u32 s46, {NWI}")
            a(f"s_cselect_b64 vcc, -1, 0")
            a(f"v_cndmask_b32 v{v_doff+i}, v{t5}, v{t4}, vcc")
    a(f"v_add_u32 v{v_doff+4}, {NAI*8*1280}, v{v_doff+2}")
    a(f"v_add_u32 v{t0}, {NAI*8*1280}, v{v_doff+1}")
    a(f"s_add_u32 s46, s39, 8")
    a(f"s_cmp_lt_u32 s46, {NWI}")
    a(f"s_cselect_b64 vcc, -1, 0")
    a(f"v_cndmask_b32 v{v_doff+3}, v{t0}, v{v_doff+1}, vcc")
    a.capture()
    a(f"v_and_b32 v{t0}, 7, v{v_m}")
    for kh in range(2):
        a(f"v_add_u32 v{t1}, {4*kh}, v{v_g}")
        a(f"v_xor_b32 v{t1}, v{t1}, v{t0}")
        a(f"v_lshlrev_b32 v{t1}, 4, v{t1}")
        a(f"v_lshl_add_u32 v{t2+kh}, v{v_m}, 7, v{t1}")
    a("s_lshl_b32 s46, s43, 2")
    for j in range(4):
        a(f"s_add_u32 s47, s44, {j}")
        a("s_and_b32 s47, s47, 3")
        a("s_add_u32 s47, s47, s46")
        a(f"s_lshl_b32 s47, s47, 11")
        a(f"s_add_u32 s47, s47, {ARING + HOFF*128}")
        for kh in range(2):
            a(f"v_add_u32 v{v_aa+2*j+kh}, s47, v{t2+kh}")
    if attn:
        for kh in range(2):
            a(f"v_add_u32 v{v_ha+kh}, {ARING}, v{t2+kh}") if ARING else a(f"v_mov_b32 v{v_ha+kh}, v{t2+kh}")
    a(f"v_lshrrev_b32 v{t0}, 1, v{v_g}")
    a(f"v_lshlrev_b32 v{t0}, 4, v{t0}")
    a(f"v_and_b32 v{t1}, 1, v{v_g}")
    a(f"v_lshl_add_u32 v{t0}, v{t1}, 2, v{t0}")
    a(f"v_bfe_u32 v{t1}, v{v_lane}, 2, 2")
    a(f"v_add_u32 v{t0}, v{t0}, v{t1}")
    a(f"v_bfe_u32 v{t1}, v{t0}, 1, 2")
    a(f"v_mul_u32_u24 v{t0}, {WP}, v{t0}")
    a(f"v_and_b32 v{t2}, 3, v{v_lane}")
    a(f"v_lshl_add_u32 v{t0}, v{t2}, 3, v{t0}")
    a(f"v_add_u32 v{t0}, {WRING}, v{t0}")
    for j in range(NJW):
        if attn:
            a(f"s_lshl_b32 s47, s43, 1")
            a(f"s_add_u32 s47, s47, {j}")
            a("s_and_b32 s47, s47, 3")
            a("s_lshl_b32 s46, s44, 2")
            a(f"s_add_u32 s{56+j}, s47, s46")
            a(f"s_lshl_b32 s47, s{56+j}, 5")
            a(f"v_add_u32 v{v_wa+j}, s47, v{t0}")
        else:
            a("s_mul_i32 s46, s44, 3")
            a(f"s_add_u32 s{56+j}, s46, {j}")
            a(f"v_xor_b32 v{t2}, s{56+j}, v{t1}")
            a(f"v_lshl_add_u32 v{v_wa+j}, v{t2}, 5, v{t0}")
    for j in range(NJW):
        a(f"v_add_u32 v{v_wa+4+j}, {SLO*WSTG}, v{v_wa+j}")
    for i in range(16 * NJW):
        a(f"v_mov_b32 v{acc+i}, 0")
    for i in range(4 * (2 if attn else 3)):
        a(f"v_mov_b32 v{acch+i}, 0")
    for i in range(16):
        a(f"v_mov_b32 v{v_st+i}, 0")
    for i in range(4):
        a(f"v_mov_b32 v{v_ones+i}, 0x3f803f80")
    a(f"v_cmp_eq_u32 s[54:55], 0, v{v_m}")
    a("s_mov_b32 s60, 0x3f803f80")
    deferred = a.release()
    a("s_waitcnt lgkmcnt(0)")
    a.stamp(1)
    srd(a, 8, 4, 5, S * D * 2)
    if attn:
        srd(a, 12, 6, 7, D * 3840)
    else:
        srd(a, 12, 28, 29, D * 3072)
        srd(a, 24, 30, 31, F * 2)
    srd(a, 20, 34, 35, S * OHP)
    a(f"s_add_u32 s46, s39, 8")
    a(f"s_cmp_lt_u32 s46, {NWI}")
    a("s_cselect_b32 s53, 1, 0")
    for q in range(4):
        a(f"s_cselect_b32 s{16+q}, s{12+q}, s{8+q}")
    if not attn:
        a(f"s_add_u32 s46, s39, 16")
        a(f"s_cmp_lt_u32 s46, {NWI+NAI}")
        a("s_cselect_b32 s52, 1, 0")

    def issue(ksw, ah):
        wso = ksw * 32 * WG_P if ksw is not None else None
        wl = WRING + (ksw % NW) * WSTG if ksw is not None else None
        if ah is not None:
            ch, par = ah >> 1, ah & 1
            aso = ch * 128
            al = ARING + (ch % NA) * ASTG + par * NAI * 1024 - NWI * 1024
        tag = ("D", ksw, ah)
        if ksw is not None:
            a(f"s_mov_b32 s46, {wso}")
            a(f"s_add_u32 m0, s45, {wl}")
            a("s_nop 0")
            a.vmem(f"buffer_load_dwordx4 v{v_doff}, s[12:15], s46 offen lds", tag)
        OOR = 0x30000
        if ksw is not None or ah is not None:
            a("s_cmp_lg_u32 s53, 0")
            a(f"s_mov_b32 s46, {aso if ah is not None else BIG}")
            a(f"s_cmov_b32 s46, {wso if ksw is not None else BIG}")
            a(f"s_mov_b32 s47, {(al + 8192) & 0xffffffff if ah is not None else OOR}")
            a(f"s_cmov_b32 s47, {wl + 8192 if ksw is not None else OOR}")
            a("s_add_u32 m0, s45, s47")
            a("s_nop 0")
            a.vmem(f"buffer_load_dwordx4 v{v_doff+1+(2*(ah&1) if ah is not None else 0)}, s[16:19], s46 offen lds", tag)
        if ah is not None:
            a(f"s_mov_b32 s46, {aso}")
            if attn:
                a(f"s_add_u32 m0, s45, {al + 16384}")
            else:
                a("s_cmp_lg_u32 s52, 0")
                a(f"s_mov_b32 s47, {OOR}")
                a(f"s_cmov_b32 s47, {al + 16384}")
                a("s_add_u32 m0, s45, s47")
            a("s_nop 0")
            a.vmem(f"buffer_load_dwordx4 v{v_doff+2+2*(ah&1)}, s[8:11], s46 offen lds", tag)
        return tag

    def reads(ks):
        b = ks & 1; kh = ks & 1
        st = ks % NW
        wreg, woff = (v_wa, st * WSTG) if st < SLO else (v_wa + 4, (st - SLO) * WSTG)
        aoff = ((ks >> 1) % NA) * ASTG
        ins = []
        for j in range(NJW):
            for q in range(2):
                ins.append(f"ds_read_b64_tr_b16 {vr(Wf+4*NJW*b+4*j+2*q,2)}, v{wreg+j} offset:{woff+q*8*WP}")
        for j in range(4):
            ins.append(f"ds_read_b128 {vr(Af+4*NAF*b+4*j,4)}, v{v_aa+2*j+kh} offset:{aoff}")
        if attn:
            ins.append(f"ds_read_b128 {vr(Af+4*NAF*b+16,4)}, v{v_ha+kh} offset:{aoff}")
        return ins
    NRD = 2 * NJW + NAF
    def compute(ks):
        b = ks & 1
        af = Af + 4 * NAF * b; wf = Wf + 4 * NJW * b
        valu = []
        pre = []
        if attn:
            for d in range(4):
                pre.append(f"v_cndmask_b32 v{af+16+d}, v{af+16+d}, v{v_ones}, s[54:55]")
        mf = []
        for jw in range(NJW):
            for ja in range(4):
                c = acc + 4 * (jw * 4 + ja)
                mf.append(f"v_mfma_f32_16x16x32_bf16 {vr(c,4)}, {vr(wf+4*jw,4)}, {vr(af+4*ja,4)}, {vr(c,4)}")
        SV = os.environ.get("STATS_VALU")
        if SV == "1":
            for d in range(4):
                valu.append(f"v_lshlrev_b32 v{t5}, 16, v{af+d}")
                valu.append(f"v_and_b32 v{t6}, 0xffff0000, v{af+d}")
                valu.append(f"v_add_f32 v{v_st}, v{v_st}, v{t5}")
                valu.append(f"v_add_f32 v{v_st+1}, v{v_st+1}, v{t6}")
                valu.append(f"v_fmac_f32 v{v_st+2}, v{t5}, v{t5}")
                valu.append(f"v_fmac_f32 v{v_st+3}, v{t6}, v{t6}")
        elif SV == "2":
            pass
        else:
            mf.append(f"v_mfma_f32_16x16x32_bf16 {vr(v_st,4)}, {vr(v_ones,4)}, {vr(af,4)}, {vr(v_st,4)}")
            mf.append(f"v_mfma_f32_16x16x32_bf16 {vr(v_st+4,4)}, {vr(af,4)}, {vr(af,4)}, {vr(v_st+4,4)}")
        mh = []
        for jw in range(2 if attn else 3):
            c = acch + 4 * jw
            src = vr(af + 16, 4) if attn else vr(v_ones, 4)
            mh.append(f"v_mfma_f32_16x16x32_bf16 {vr(c,4)}, {vr(wf+4*jw,4)}, {src}, {vr(c,4)}")
        return mf, mh, pre + valu

    tagW = {}; tagA = {}
    def touch_prefetch():
        if os.environ.get("NOPF"): return
        nl = 6 if attn else 3
        a(f"v_mul_u32_u24 v{t0}, {(65536 + nl - 1)//nl}, v{v_lane}")
        a(f"v_lshrrev_b32 v{t0}, 16, v{t0}")
        a(f"v_mul_u32_u24 v{t1}, {nl}, v{t0}")
        a(f"v_sub_u32 v{t1}, v{v_lane}, v{t1}")
        a("s_mul_i32 s46, s37, 40")
        a("s_mul_i32 s47, s39, 5")
        a("s_add_u32 s46, s46, s47")
        a(f"v_add_u32 v{t0}, s46, v{t0}")
        a(f"v_mul_u32_u24 v{t0}, {WG_P}, v{t0}")
        if attn:
            a(f"v_lshrrev_b32 v{t2}, 1, v{t1}")
            a(f"v_and_b32 v{t1}, 1, v{t1}")
            a(f"v_mul_u32_u24 v{t2}, 1280, v{t2}")
            a(f"v_mul_u32_u24 v{t1}, 156, v{t1}")
            a(f"v_add3_u32 v{t0}, v{t0}, v{t1}, v{t2}")
        else:
            a(f"v_lshl_add_u32 v{t0}, v{t1}, 7, v{t0}")
        a(f"v_add_u32 v{t0}, s42, v{t0}")
        a(f"v_mov_b32 v{t3}, {BIG}")
        a(f"v_cmp_gt_u32 vcc, {5*nl}, v{v_lane}")
        a("s_nop 1")
        a(f"v_cndmask_b32 v{t0}, v{t3}, v{t0}, vcc")
        a.vmem(f"buffer_load_dword v{t7}, v{t0}, s[12:15], 0 offen", "pf")
        a("s_lshl_b32 s46, s38, 1")
        a("s_add_u32 s46, s46, s36")
        a("s_mul_i32 s46, s46, 80")
        a("s_mul_i32 s47, s39, 10")
        a("s_add_u32 s46, s46, s47")
        a("s_mul_i32 s47, s40, 10")
        a("s_add_u32 s46, s46, s47")
        a(f"v_add_u32 v{t0}, s46, v{v_lane}")
        a(f"v_lshlrev_b32 v{t0}, 7, v{t0}")
        a(f"v_cmp_gt_u32 vcc, 10, v{v_lane}")
        a("s_nop 1")
        a(f"v_cndmask_b32 v{t0}, v{t3}, v{t0}, vcc")
        a.vmem(f"buffer_load_dword v{t7}, v{t0}, s[8:11], 0 offen", "pf")
    def k2_prefetch():
        a(f"v_mov_b32 v{t3}, {BIG}")
        srd(a, 68, 74, 75, D * 1280)
        srd(a, 76, 76, 77, F * 1280)
        a("s_mul_i32 s46, s2, 25")
        a("s_mul_i32 s47, s2, 60")
        a(f"v_add_u32 v{t0}, s46, v{v_lane}")
        a(f"v_lshlrev_b32 v{t0}, 7, v{t0}")
        a(f"v_cmp_gt_u32 vcc, 25, v{v_lane}")
        a("s_cmp_eq_u32 s39, 0")
        a("s_cselect_b64 s[48:49], vcc, 0")
        a(f"v_add_u32 v{t1}, s47, v{v_lane}")
        a(f"v_lshlrev_b32 v{t1}, 7, v{t1}")
        a(f"v_cmp_gt_u32 vcc, 60, v{v_lane}")
        a("s_cmp_eq_u32 s39, 1")
        a("s_cselect_b64 s[50:51], vcc, 0")
        a(f"v_cndmask_b32 v{t0}, v{t3}, v{t0}, s[48:49]")
        a(f"v_cndmask_b32 v{t1}, v{t3}, v{t1}, s[50:51]")
        a.vmem(f"buffer_load_dword v{t7}, v{t0}, s[68:71], 0 offen", "pf")
        a.vmem(f"buffer_load_dword v{t7}, v{t1}, s[76:79], 0 offen", "pf")
    def k2_l2_prefetch():
        a(f"v_mul_u32_u24 v{t0}, 205, v{v_lane}")
        a(f"v_lshrrev_b32 v{t0}, 10, v{t0}")
        a(f"v_mul_u32_u24 v{t1}, 5, v{t0}")
        a(f"v_sub_u32 v{t1}, v{v_lane}, v{t1}")
        a("s_lshr_b32 s46, s38, 2")
        a("s_mul_i32 s47, s46, 3")
        a(f"v_add_u32 v{t2}, s47, v{t1}")
        a("s_lshl_b32 s47, s46, 1")
        a("s_add_u32 s47, s47, 3")
        a(f"v_add_u32 v{t3}, s47, v{t1}")
        a(f"v_cmp_gt_u32 vcc, 3, v{t1}")
        a("s_mul_i32 s46, s39, 9")
        a(f"v_add_u32 v{t0}, s46, v{t0}")
        a(f"v_cndmask_b32 v{t2}, v{t3}, v{t2}, vcc")
        a(f"v_cmp_gt_u32 s[48:49], 45, v{v_lane}")
        a(f"v_cmp_gt_u32 vcc, 68, v{t0}")
        a("s_and_b64 s[48:49], s[48:49], vcc")
        a("s_lshr_b32 s46, s2, 3")
        a("s_mul_i32 s46, s46, 68")
        a(f"v_add_u32 v{t0}, s46, v{t0}")
        a(f"v_mul_u32_u24 v{t0}, 1280, v{t0}")
        a(f"v_lshl_add_u32 v{t0}, v{t2}, 7, v{t0}")
        a(f"v_mov_b32 v{t3}, {BIG}")
        a(f"v_cndmask_b32 v{t0}, v{t3}, v{t0}, s[48:49]")
        a(f"v_subrev_u32 v{t1}, {640*1280}, v{t0}")
        a.vmem(f"buffer_load_dword v{t7}, v{t0}, s[68:71], 0 offen", "pf")
        a.vmem(f"buffer_load_dword v{t7}, v{t1}, s[76:79], 0 offen", "pf")
    nxt = {"w": 0, "a": 0}
    def issue_next(limW, limA):
        ksw = nxt["w"] if nxt["w"] < min(limW, NKS) else None
        ah = nxt["a"] if nxt["a"] < min(limA, NKS) else None
        if ksw is None and ah is None: return
        tg = issue(ksw, ah)
        if ksw is not None: tagW[ksw] = tg; nxt["w"] += 1
        if ah is not None: tagA[ah] = tg; nxt["a"] += 1
    PRE = int(os.environ.get("K1_PRE", 2))
    RAMP = int(os.environ.get("K1_RAMP", 2))
    if os.environ.get("PFORDER") == "0": touch_prefetch()
    for i in range(PRE):
        issue_next(NW - 1, AD)
    if os.environ.get("PFORDER") == "1": touch_prefetch()
    for ins in deferred: a(ins)
    if os.environ.get("FUSED"):
        a("s_lshl_b32 s46, s38, 4")
        a("s_add_u32 s46, s46, s37")
        a(f"s_add_u32 s46, s46, {0 if attn else 128}")
        a("s_lshl_b32 s46, s46, 7")
        a(f"s_add_u32 s46, s46, {0x1000000}")
        a(f"v_mov_b32 v{t0}, s46")
        a(f"v_mov_b32 v{t1}, {BIG}")
        a(f"v_cmp_eq_u32 vcc, 0, v0")
        a(f"v_mov_b32 v{t2}, 0")
        a(f"v_mov_b32 v{t3}, 0")
        a(f"v_cndmask_b32 v{t0}, v{t1}, v{t0}, vcc")
        srd(a, 92, 34, 35, 0x2000000)
        a.vmem(f"buffer_store_dwordx2 v[{t2}:{t3}], v{t0}, s[92:95], 0 offen sc1", "mbz")
    PF_AT = int(os.environ.get('PF_AT', -1))
    if PF_AT < 0 and not os.environ.get('PFORDER'): touch_prefetch()
    if not attn:
        for j in range(NJW):
            a(f"s_lshl_b32 s46, s{56+j}, 5")
            a("s_add_u32 s46, s46, s42")
            a(f"v_lshl_add_u32 v{t0}, v{v_g}, 3, s46")
            a.vmem(f"buffer_load_dwordx2 {vr(v_b1+2*j,2)}, v{t0}, s[24:27], 0 offen", "b1")
    a.vm_wait([tagW[0], tagA[0], tagA[1]])
    a("s_barrier")
    a.stamp(2)
    for ins in reads(0): a(ins)
    for ks in range(NKS):
        a.comment(f"{P} k-step {ks}")
        side = []
        if ks + 1 < NKS:
            need = [tagW[ks + 1]]
            if (ks + 1) % 2 == 0:
                need += [tagA[ks + 1], tagA[ks + 2]]
            a.vm_wait(need, "lgkmcnt(0)")
            a("s_barrier")
            side += reads(ks + 1)
            a.capture()
            for _ in range(RAMP):
                issue_next(ks + NW, ks + AD + 1)
            if ks == 5 and os.environ.get("FUSED"):
                assert "mbz" not in a.vm
                a("s_load_dwordx2 s[92:93], s[0:1], 72")
            if ks == 6 and os.environ.get("FUSED"):
                srd(a, 92, 92, 93, 256)
                a(f"v_mov_b32 v{t5}, {BIG}")
                a(f"v_cmp_eq_u32 vcc, 0, v0")
                a(f"v_mov_b32 v{t6}, 1")
                a("s_nop 0")
                a(f"v_cndmask_b32 v{t5}, v{t5}, 0, vcc")
                a.vmem(f"buffer_atomic_add v{t6}, v{t5}, s[92:95], 0 offen", "mba")
            if ks == PF_AT: touch_prefetch()
            if ks == int(os.environ.get("K2PF_AT", 7)) and not os.environ.get("NOPF"):
                k2_prefetch()
            if ks == int(os.environ.get("L2PF_AT", 99)):
                k2_l2_prefetch()
            side += a.release()
        else:
            a("s_waitcnt lgkmcnt(0)")
        mf, mh, valu = compute(ks)
        if os.environ.get("NOVALU"): valu = []
        if os.environ.get("NOMF"): mf = mf[:1]; mh = []
        side += valu
        interleave(a, mf, side)
        a("s_nop 1")
        for m in mh: a(m)
        if attn:
            L = a.newlabel("HS")
            af = Af + 4 * NAF * (ks & 1)
            a("s_cmp_lg_u32 s39, 7")
            a(f"s_cbranch_scc1 {L}")
            a(f"v_mfma_f32_16x16x32_bf16 {vr(v_st+8,4)}, {vr(v_ones,4)}, {vr(af+16,4)}, {vr(v_st+8,4)}")
            a(f"v_mfma_f32_16x16x32_bf16 {vr(v_st+12,4)}, {vr(af+16,4)}, {vr(af+16,4)}, {vr(v_st+12,4)}")
            a.label(L)
    a.stamp(3)
    QKV = 2560; STATS = 0; CS = 1280; EDUM = 2304 - QKV
    import struct
    f2u = lambda x: struct.unpack("<I", struct.pack("<f", x))[0]
    a("s_nop 7")
    a(f"v_and_b32 v{t0}, 3, v{v_m}")
    a(f"v_cmp_eq_u32 s[66:67], 1, v{t0}")
    a(f"v_cmp_eq_u32 s[68:69], 2, v{t0}")
    a(f"v_cmp_eq_u32 s[70:71], 3, v{t0}")
    a(f"v_lshrrev_b32 v{t1}, 2, v{v_m}")
    a(f"v_cmp_eq_u32 s[72:73], v{t1}, v{v_g}")
    a(f"s_mov_b32 s46, {0x3acccccd}")
    a(f"s_mov_b32 s47, {0x3727c5ac}")
    def stats_math(b):
        s0, s1 = v_st + b, v_st + b + 1
        a(f"v_cndmask_b32 v{s1}, v{v_st+b+4}, v{v_st+b+5}, s[66:67]")
        a(f"v_cndmask_b32 v{s1}, v{s1}, v{v_st+b+6}, s[68:69]")
        a(f"v_cndmask_b32 v{s1}, v{s1}, v{v_st+b+7}, s[70:71]")
        a(f"v_mul_f32 v{s0}, s46, v{s0}")
        a(f"v_mul_f32 v{s1}, s46, v{s1}")
        a(f"v_fma_f32 v{s1}, -v{s0}, v{s0}, v{s1}")
        a(f"v_max_f32 v{s1}, 0, v{s1}")
        bf16r(a, t0, s0)
        bf16r(a, t1, s1)
        a(f"v_add_f32 v{t1}, s47, v{t1}")
        bf16r(a, t1, t1)
        a(f"v_sqrt_f32 v{t1}, v{t1}")
        a("s_nop 0")
        bf16r(a, t1, t1)
        a(f"v_rcp_f32 v{t1}, v{t1}")
        a("s_nop 0")
        if attn:
            a(f"v_mov_b32 v{s0}, v{t1}")
            a(f"v_sub_f32 v{s1}, 0, v{t0}")
        else:
            a(f"v_sub_f32 v{t2}, v{s0}, v{t0}")
            a(f"v_mul_f32 v{t2}, v{t2}, v{t1}")
            a(f"v_mul_f32 v{t3}, v{s1}, v{t1}")
            a(f"v_mul_f32 v{t3}, v{t3}, v{t1}")
            bf16r(a, t2, t2)
            bf16r(a, t3, t3)
            a(f"v_add_f32 v{t3}, s47, v{t3}")
            bf16r(a, t3, t3)
            a(f"v_sqrt_f32 v{t3}, v{t3}")
            a("s_nop 0")
            bf16r(a, t3, t3)
            a(f"v_rcp_f32 v{t3}, v{t3}")
            a(f"v_fma_f32 v{t2}, v{t0}, v{t1}, v{t2}")
            a(f"v_mul_f32 v{s0}, v{t1}, v{t3}")
            a(f"v_mul_f32 v{s1}, -v{t2}, v{t3}")
    stats_math(0)
    if attn:
        L = a.newlabel("HM")
        a("s_cmp_lg_u32 s39, 7")
        a(f"s_cbranch_scc1 {L}")
        stats_math(8)
        a.label(L)
    a("s_lshl_b32 s46, s43, 2")
    a("s_add_u32 s46, s46, s44")
    a("s_lshl_b32 s46, s46, 7")
    a(f"s_add_u32 s46, s46, {STATS + HOFF*8}")
    a(f"v_lshl_add_u32 v{t0}, v{v_m}, 3, s46")
    a(f"v_lshlrev_b32 v{t1}, 3, v{v_m}")
    a("s_barrier")
    a("s_mov_b64 s[48:49], exec")
    a("s_mov_b64 exec, s[72:73]")
    a(f"ds_write_b64 v{t0}, {vr(v_st,2)}")
    if attn:
        L = a.newlabel("HW")
        a("s_cmp_lg_u32 s39, 7")
        a(f"s_cbranch_scc1 {L}")
        a(f"ds_write_b64 v{t1}, {vr(v_st+8,2)} offset:{STATS}")
        a.label(L)
        a("s_mov_b64 exec, s[54:55]")
        for j in range(2):
            a(f"s_lshl_b32 s46, s{56+j}, 6")
            a(f"v_lshl_add_u32 v{t2}, v{v_g}, 4, s46")
            a(f"ds_write_b128 v{t2}, {vr(acch+4*j,4)} offset:{CS}")
    a("s_mov_b64 exec, s[48:49]")
    sreg = Af
    csr = Af + 12
    rowo = Wf
    for j in range(4):
        a(f"s_add_u32 s47, s44, {j}")
        a("s_and_b32 s47, s47, 3")
        a("s_lshl_b32 s46, s43, 2")
        a(f"s_add_u32 s{62+j}, s47, s46")
    if attn:
        a(f"v_mul_u32_u24 v{t2}, {QP}, v{v_m}")
        a(f"v_lshl_add_u32 v{rowo+4}, v{v_g}, 3, v{t2}")
        for j in range(4):
            a(f"s_mul_i32 s46, s{62+j}, {16*QP}")
            a(f"s_add_u32 s46, s46, {16*QP}")
            a(f"v_add_u32 v{rowo+j}, s46, v{rowo+4}")
    else:
        a(f"v_mul_u32_u24 v{t2}, 400, v{v_m}")
        a(f"v_lshl_add_u32 v{t2}, v{v_g}, 3, v{t2}")
        a("s_mul_i32 s49, s44, 96")
        a(f"v_add_u32 v{t2}, s49, v{t2}")
        for j in range(4):
            a(f"s_mul_i32 s48, s{62+j}, {16*400}")
            a(f"v_add_u32 v{rowo+j}, s48, v{t2}")
    if attn:
        attention_mfma(a, R, t, v_lane, 0)
    a("s_waitcnt lgkmcnt(0)")
    a("s_barrier")
    for j in range(4):
        a(f"s_lshl_b32 s47, s{62+j}, 7")
        a(f"v_add_u32 v{t0}, s47, v{t1}")
        a(f"ds_read_b64 {vr(sreg+2*j,2)}, v{t0} offset:{STATS + HOFF*8}")
    if attn:
        a(f"ds_read_b64 {vr(sreg+8,2)}, v{t1} offset:{STATS}")
        for j in range(4):
            a(f"s_lshl_b32 s46, s{56+j}, 6")
            a(f"v_lshl_add_u32 v{t0}, v{v_g}, 4, s46")
            a(f"ds_read_b128 {vr(csr+4*j,4)}, v{t0} offset:{CS}")
        a("s_waitcnt lgkmcnt(0)")
        for jw in range(4):
            a(f"s_lshl_b32 s46, s{56+jw}, 5")
            a(f"s_cmp_eq_u32 s{56+jw}, 15")
            a("s_cmov_b32 s46, 0x40000000")
            for ja in range(5):
                if ja == 4 and jw >= 2: continue
                c = acc + 4 * (jw * 4 + ja) if ja < 4 else acch + 4 * jw
                for r in range(4):
                    a(f"v_fma_f32 v{c+r}, v{csr+4*jw+r}, v{sreg+2*ja+1}, v{c+r}")
                a(f"v_add_u32 v{t0+ja}, s46, v{rowo+ja}")
                for r in range(4):
                    a(f"v_mul_f32 v{c+r}, v{c+r}, v{sreg+2*ja}")
                a(f"v_cvt_pk_bf16_f32 v{c}, v{c}, v{c+1}")
                a(f"v_cvt_pk_bf16_f32 v{c+1}, v{c+2}, v{c+3}")
                a(f"ds_write_b64 v{t0+ja}, {vr(c,2)} offset:{QKV}")
        a("s_waitcnt lgkmcnt(0)")
        a("s_barrier")
        a.stamp(4)
        attention_mfma(a, R, t, v_lane, 1)
    else:
        a.vm_wait("b1")
        C1 = -2.0 * 0.7978845608028654 * 1.4426950408889634
        a(f"s_mov_b32 s46, {f2u(C1)}")
        a(f"s_mov_b32 s47, {f2u(C1*0.044715)}")
        a(f"v_mov_b32 v{t7}, s46")
        for jw in range(3):
            bb = csr + 4 * jw
            for h in range(2):
                a(f"v_lshlrev_b32 v{bb+2*h}, 16, v{v_b1+2*jw+h}")
                a(f"v_and_b32 v{bb+2*h+1}, 0xffff0000, v{v_b1+2*jw+h}")
            a(f"s_lshl_b32 s48, s{56+jw}, 5")
            a("s_add_u32 s48, s48, s42")
            a(f"s_add_u32 s{66+jw}, s48, 1280")
        a("s_waitcnt lgkmcnt(0)")
        a.stamp(4)
        u = [t0, t1, t2, t3]
        for jw in range(3):
            bb = csr + 4 * jw
            for ja in range(4):
                c = acc + 4 * (jw * 4 + ja)
                for r in range(4):
                    a(f"v_fma_f32 v{u[r]}, v{acch+4*jw+r}, v{sreg+2*ja+1}, v{bb+r}")
                for r in range(4):
                    a(f"v_fma_f32 v{c+r}, v{c+r}, v{sreg+2*ja}, v{u[r]}")
                for r in range(4):
                    a(f"v_mul_f32 v{u[r]}, v{c+r}, v{c+r}")
                for r in range(4):
                    a(f"v_fma_f32 v{u[r]}, v{u[r]}, s47, v{t7}")
                for r in range(4):
                    a(f"v_mul_f32 v{u[r]}, v{u[r]}, v{c+r}")
                for r in range(4):
                    a(f"v_exp_f32 v{u[r]}, v{u[r]}")
                for r in range(4):
                    a(f"v_add_f32 v{u[r]}, 1.0, v{u[r]}")
                for r in range(4):
                    a(f"v_rcp_f32 v{u[r]}, v{u[r]}")
                for r in range(4):
                    a(f"v_mul_f32 v{c+r}, v{c+r}, v{u[r]}")
                a(f"v_cvt_pk_bf16_f32 v{c}, v{c}, v{c+1}")
                a(f"v_cvt_pk_bf16_f32 v{c+1}, v{c+2}, v{c+3}")
                a(f"ds_write_b64 v{rowo+ja}, {vr(c,2)} offset:{4096 + 32*jw}")
        a("s_waitcnt lgkmcnt(0)")
        a("s_barrier")
        a("s_add_u32 s66, s42, 1280")
        store_tile(a, t, 4096, 384, 66, 24, 400)
    if os.environ.get("FUSED"):
        a.stamp(1)
        a.trace_mark(0)
    elif not os.environ.get("STAMPA"):
        a.stamp(5)
    if os.environ.get("STAMP") and not os.environ.get("FUSED"):
        a("s_waitcnt vmcnt(0)")
    if not os.environ.get("STAMPA") and not os.environ.get("FUSED"):
        a.stamp(6)
    if not os.environ.get("FUSED"): a.stamp_dump(8 if os.environ.get("STAMPA") else 7, t0, wg=(0 if attn else 8)) if (attn == (os.environ.get("STAMP") == "1")) else None
    if os.environ.get("FUSED"):
        from gen_k2f import k2_body
        from gen_k2f import notify, notify_fire
        a("s_barrier")
        L = a.newlabel("P2"); L7 = a.newlabel("W7"); L7b = a.newlabel("W7B")
        a("s_cmp_lt_u32 s39, 4")
        a(f"s_cbranch_scc1 {L}")
        a("s_cmp_eq_u32 s39, 7")
        a(f"s_cbranch_scc1 {L7}")
        a("s_waitcnt vmcnt(0)")
        a("s_barrier")
        a("s_branch K1_END")
        a.label(L7)
        notify(a, attn, t)
        a("s_waitcnt vmcnt(0)")
        a("s_barrier")
        notify_fire(a, attn, t)
        a("s_branch K1_END")
        a.label(L)
        nv2, l2 = k2_body(a, 64 if attn else 96)
        a.stamp(7)
        if os.environ.get("STAMP") and (attn == (os.environ.get("STAMP") == "1")):
            a.stamp_dump(8, 4, wg=(0 if attn else 8), off=128)
        a.trace_end(24)
        return max(R.cur, nv2), max(LDS_TOTAL, l2)
    a.trace_end(24)
    return R.cur, LDS_TOTAL

def attention(a, R, t, v_lane):
    import struct
    f2u = lambda x: struct.unpack("<I", struct.pack("<f", x))[0]
    t0, t1, t2, t3, t4, t5, t6, t7 = t
    base = 24
    q = 24
    kb = 34
    lg = 114
    o = 124
    pk = 144
    a(f"v_lshrrev_b32 v{t0}, 2, v0")
    a(f"v_and_b32 v{t1}, 3, v0")
    a(f"v_add_u32 v{t2}, 2, v{t0}")
    a(f"v_mul_u32_u24 v{t2}, 480, v{t2}")
    a(f"v_mul_u32_u24 v{t3}, 40, v{t1}")
    a(f"v_add_u32 v{t2}, v{t2}, v{t3}")
    a(f"v_add_u32 v{t2}, 2560, v{t2}")
    for j in range(5):
        a(f"ds_read_b64 {vr(q+2*j,2)}, v{t2} offset:{14*480 + 8*j}")
    for w in range(8):
        for j in range(5):
            a(f"ds_read_b64 {vr(kb+10*w+2*j,2)}, v{t2} offset:{(14-2*w)*480 + 160 + 8*j}")
    a(f"v_add_u32 v{t4}, s40, v{t0}")
    for w in range(8):
        a(f"s_waitcnt lgkmcnt({min(15, 5*(7-w))})")
        a(f"v_mov_b32 v{lg+w}, 0")
        for j in range(10):
            a(f"v_dot2_f32_bf16 v{lg+w}, v{q+j}, v{kb+10*w+j}, v{lg+w}")
    a("s_nop 1")
    for w in range(8):
        for j in range(5):
            a(f"ds_read_b64 {vr(kb+10*w+2*j,2)}, v{t2} offset:{(14-2*w)*480 + 320 + 8*j}")
    sc = 20 ** -0.5 * 1.4426950408889634
    a(f"s_mov_b32 s46, {f2u(sc)}")
    a(f"v_mov_b32 v{t5}, {f2u(-1e9)}")
    for w in range(8):
        a(f"v_mul_f32 v{lg+w}, s46, v{lg+w}")
        if w:
            a(f"v_cmp_gt_u32 vcc, {2*w}, v{t4}")
            a("s_nop 1")
            a(f"v_cndmask_b32 v{lg+w}, v{lg+w}, v{t5}, vcc")
    a(f"v_max3_f32 v{t6}, v{lg}, v{lg+1}, v{lg+2}")
    a(f"v_max3_f32 v{t6}, v{t6}, v{lg+3}, v{lg+4}")
    a(f"v_max3_f32 v{t6}, v{t6}, v{lg+5}, v{lg+6}")
    a(f"v_max_f32 v{t6}, v{t6}, v{lg+7}")
    for w in range(8):
        a(f"v_sub_f32 v{lg+w}, v{lg+w}, v{t6}")
        a(f"v_exp_f32 v{lg+w}, v{lg+w}")
    a("s_nop 0")
    a(f"v_add_f32 v{t7}, v{lg}, v{lg+1}")
    for w in range(2, 8):
        a(f"v_add_f32 v{t7}, v{t7}, v{lg+w}")
    a(f"v_rcp_f32 v{t7}, v{t7}")
    a("s_nop 0")
    for w in range(8):
        a(f"v_mul_f32 v{lg+w}, v{lg+w}, v{t7}")
        a(f"v_cvt_pk_bf16_f32 v{pk+2*w}, v{lg+w}, 0")
        a(f"v_lshlrev_b32 v{pk+2*w+1}, 16, v{pk+2*w}")
    for d in range(20):
        a(f"v_mov_b32 v{o+d}, 0")
    for w in range(8):
        a(f"s_waitcnt lgkmcnt({min(15, 5*(7-w))})")
        for j in range(10):
            a(f"v_dot2_f32_bf16 v{o+2*j}, v{kb+10*w+j}, v{pk+2*w}, v{o+2*j}")
            a(f"v_dot2_f32_bf16 v{o+2*j+1}, v{kb+10*w+j}, v{pk+2*w+1}, v{o+2*j+1}")
    a("s_nop 1")
    for j in range(10):
        a(f"v_cvt_pk_bf16_f32 v{q+j}, v{o+2*j}, v{o+2*j+1}")
    a(f"s_movk_i32 s46, {OHP}")
    a(f"v_mul_lo_u32 v{t4}, v{t4}, s46")
    a(f"v_add3_u32 v{t4}, v{t4}, v{t3}, s42")
    a(f"buffer_store_dwordx4 {vr(q,4)}, v{t4}, s[20:23], 0 offen")
    a(f"buffer_store_dwordx4 {vr(q+4,4)}, v{t4}, s[20:23], 0 offen offset:16")
    a(f"buffer_store_dwordx2 {vr(q+8,2)}, v{t4}, s[20:23], 0 offen offset:32")

def attention_mfma(a, R, t, v_lane, phase):
    import struct
    f2u = lambda x: struct.unpack("<I", struct.pack("<f", x))[0]
    t0, t1, t2, t3, t4, t5, t6, t7 = t
    v_m, v_g = 2, 3
    QKV = 2560
    NB = 4
    Q = 24
    K = Q + 4 * NB
    V = K + 8 * NB
    Sx = V + 8 * NB
    bias = Sx + 8 * NB
    mx = bias + 8
    sm = mx + NB
    tmp = sm + NB
    HB = 220
    aq = HB; ak = aq + 1; av = ak + 1; ast = av + 1; hp1 = ast + 1; hp2 = hp1 + 1; ast2 = hp2 + 1; u0 = ast2 + 1; u1 = u0 + 1; u2 = u1 + 1; u3 = u2 + 1; u4 = u3 + 1
    bias = HB + 12
    assert (phase == 1 or R.cur <= HB) and bias + 8 <= 256
    R.cur = max(R.cur, bias + 8)
    OIMG = 73728
    if phase == 0:
        t0, t1, t2, t3, t4 = u0, u1, u2, u3, u4
        a("s_and_b32 s66, s39, 1")
        a("s_lshr_b32 s67, s39, 1")
        a("s_mul_i32 s68, s67, 40")
        a(f"v_lshl_add_u32 v{t0}, v{v_m}, 1, s66")
        a(f"v_mul_u32_u24 v{t1}, {QP}, v{t0}")
        a(f"v_lshl_add_u32 v{t1}, v{v_g}, 4, v{t1}")
        a(f"v_add_u32 v{t1}, s68, v{t1}")
        a(f"v_add_u32 v{aq}, {QKV + 16*QP}, v{t1}")
        a(f"v_add_u32 v{ak}, 160, v{aq}")
        a(f"v_subrev_u32 v{t2}, 16, v{t0}")
        a(f"v_max_i32 v{t2}, 0, v{t2}")
        a(f"v_mul_u32_u24 v{t2}, {QP}, v{t2}")
        a(f"v_lshl_add_u32 v{t2}, v{v_g}, 4, v{t2}")
        a(f"v_add_u32 v{t2}, s68, v{t2}")
        a(f"v_add_u32 v{hp1}, {QKV + 160}, v{t2}")
        a(f"v_mul_u32_u24 v{t0}, 176, v{t0}")
        a(f"v_lshl_add_u32 v{t0}, v{v_g}, 3, v{t0}")
        a(f"s_add_u32 s69, s68, {OIMG}")
        a(f"v_add_u32 v{ast}, s69, v{t0}")
        a(f"v_mov_b32 v{t1}, 0x40000000")
        a(f"v_cmp_eq_u32 vcc, 0, v{v_g}")
        a(f"v_bfe_u32 v{t2}, v{v_lane}, 2, 2")
        a(f"v_lshl_add_u32 v{t2}, v{v_g}, 2, v{t2}")
        a(f"v_cndmask_b32 v{ast2}, v{t1}, v{ast}, vcc")
        a(f"v_lshl_add_u32 v{t2}, v{t2}, 1, s66")
        a(f"v_and_b32 v{t3}, 3, v{v_lane}")
        a(f"v_lshl_add_u32 v{t3}, v{t3}, 3, s68")
        a(f"v_mul_u32_u24 v{t4}, {QP}, v{t2}")
        a(f"v_add_u32 v{t4}, v{t4}, v{t3}")
        a(f"v_add_u32 v{av}, {QKV + 16*QP + 320}, v{t4}")
        a(f"v_subrev_u32 v{t2}, 16, v{t2}")
        a(f"v_max_i32 v{t2}, 0, v{t2}")
        a(f"v_mul_u32_u24 v{t4}, {QP}, v{t2}")
        a(f"v_add_u32 v{t4}, v{t4}, v{t3}")
        a(f"v_add_u32 v{hp2}, {QKV + 320}, v{t4}")
        a(f"v_lshlrev_b32 v{t2}, 2, v{v_g}")
        a(f"v_sub_u32 v{t2}, v{v_m}, v{t2}")
        a(f"v_mov_b32 v{t3}, {f2u(-1e9)}")
        for blk in range(2):
            for r in range(4):
                a(f"v_add_u32 v{t4}, {(16 - 16*blk - r) & 0xffffffff}, v{t2}")
                a(f"v_cmp_gt_u32 vcc, 8, v{t4}")
                a("s_nop 1")
                a(f"v_cndmask_b32 v{bias+4*blk+r}, v{t3}, 0, vcc")
        a(f"v_cmp_lt_u32 s[70:71], 1, v{v_g}")
        a(f"v_cmp_eq_u32 s[72:73], 3, v{v_g}")
        a("s_cmp_eq_u32 s37, 0")
        a("s_mov_b32 s74, 0")
        a(f"s_cmov_b32 s74, {f2u(-1e9)}")
        a(f"s_mov_b32 s75, {f2u(20 ** -0.5 * 1.4426950408889634)}")
        return
    for b in range(NB):
        for hh in range(2):
            a(f"ds_read_b64 {vr(Q+4*b+2*hh,2)}, v{aq} offset:{b*32*QP + 8*hh}")
        for hh in range(2):
            if b == 0:
                a(f"ds_read_b64 {vr(K+8*b+2*hh,2)}, v{hp1} offset:{8*hh}")
            else:
                a(f"ds_read_b64 {vr(K+8*b+2*hh,2)}, v{ak} offset:{(b-1)*32*QP + 8*hh}")
            a(f"ds_read_b64 {vr(K+8*b+4+2*hh,2)}, v{ak} offset:{b*32*QP + 8*hh}")
    for b in range(NB):
        for db in range(2):
            if b == 0:
                a(f"ds_read_b64_tr_b16 {vr(V+8*b+4*db,2)}, v{hp2} offset:{32*db}")
            else:
                a(f"ds_read_b64_tr_b16 {vr(V+8*b+4*db,2)}, v{av} offset:{(b-1)*32*QP + 32*db}")
            a(f"ds_read_b64_tr_b16 {vr(V+8*b+4*db+2,2)}, v{av} offset:{b*32*QP + 32*db}")
    a(f"s_waitcnt lgkmcnt({min(15, 4*NB)})")
    if os.environ.get("STAMPA"): a.stamp(5)
    for b in range(NB):
        a(f"v_cndmask_b32 v{Q+4*b}, v{Q+4*b}, 0, s[72:73]")
        a(f"v_cndmask_b32 v{Q+4*b+1}, v{Q+4*b+1}, 0, s[72:73]")
        a(f"v_cndmask_b32 v{Q+4*b+2}, v{Q+4*b+2}, 0, s[70:71]")
        a(f"v_cndmask_b32 v{Q+4*b+3}, v{Q+4*b+3}, 0, s[70:71]")
    a("s_nop 1")
    for b in range(NB):
        for blk in range(2):
            a(f"v_mfma_f32_16x16x32_bf16 {vr(Sx+8*b+4*blk,4)}, {vr(K+8*b+4*blk,4)}, {vr(Q+4*b,4)}, 0")
    a("s_nop 7")
    for b in range(NB):
        for e in range(8):
            a(f"v_fma_f32 v{Sx+8*b+e}, v{Sx+8*b+e}, s75, v{bias+e}")
    for e in range(4):
        a(f"v_add_f32 v{Sx+e}, s74, v{Sx+e}")
    for b in range(NB):
        s = Sx + 8 * b
        a(f"v_max3_f32 v{mx+b}, v{s}, v{s+1}, v{s+2}")
        a(f"v_max3_f32 v{tmp+b}, v{s+3}, v{s+4}, v{s+5}")
        a(f"v_max3_f32 v{mx+b}, v{mx+b}, v{s+6}, v{s+7}")
        a(f"v_max_f32 v{mx+b}, v{mx+b}, v{tmp+b}")
    for op in ("v_permlane16_swap_b32", "v_permlane32_swap_b32"):
        for b in range(NB):
            a(f"v_mov_b32 v{tmp+b}, v{mx+b}")
        for b in range(NB):
            a(f"{op} v{mx+b}, v{tmp+b}")
        for b in range(NB):
            a(f"v_max_f32 v{mx+b}, v{mx+b}, v{tmp+b}")
    for b in range(NB):
        s = Sx + 8 * b
        for e in range(8):
            a(f"v_sub_f32 v{s+e}, v{s+e}, v{mx+b}")
        for e in range(8):
            a(f"v_exp_f32 v{s+e}, v{s+e}")
    for b in range(NB):
        s = Sx + 8 * b
        a(f"v_add_f32 v{sm+b}, v{s}, v{s+1}")
        a(f"v_add_f32 v{tmp+b}, v{s+2}, v{s+3}")
        a(f"v_add_f32 v{sm+b}, v{sm+b}, v{s+4}")
        a(f"v_add_f32 v{tmp+b}, v{tmp+b}, v{s+5}")
        a(f"v_add_f32 v{sm+b}, v{sm+b}, v{s+6}")
        a(f"v_add_f32 v{tmp+b}, v{tmp+b}, v{s+7}")
        a(f"v_add_f32 v{sm+b}, v{sm+b}, v{tmp+b}")
    for op in ("v_permlane16_swap_b32", "v_permlane32_swap_b32"):
        for b in range(NB):
            a(f"v_mov_b32 v{tmp+b}, v{sm+b}")
        for b in range(NB):
            a(f"{op} v{sm+b}, v{tmp+b}")
        for b in range(NB):
            a(f"v_add_f32 v{sm+b}, v{sm+b}, v{tmp+b}")
    for b in range(NB):
        a(f"v_rcp_f32 v{sm+b}, v{sm+b}")
    for b in range(NB):
        s = Sx + 8 * b
        for e in range(8):
            a(f"v_mul_f32 v{s+e}, v{s+e}, v{sm+b}")
        for e in range(4):
            a(f"v_cvt_pk_bf16_f32 v{Q+4*b+e}, v{s+2*e}, v{s+2*e+1}")
    if os.environ.get("STAMPA"): a.stamp(6)
    a("s_waitcnt lgkmcnt(0)")
    for b in range(NB):
        for db in range(2):
            a(f"v_mfma_f32_16x16x32_bf16 {vr(Sx+8*b+4*db,4)}, {vr(V+8*b+4*db,4)}, {vr(Q+4*b,4)}, 0")
    a("s_nop 7")
    for b in range(NB):
        s = Sx + 8 * b
        a(f"v_cvt_pk_bf16_f32 v{s}, v{s}, v{s+1}")
        a(f"v_cvt_pk_bf16_f32 v{s+1}, v{s+2}, v{s+3}")
        a(f"v_cvt_pk_bf16_f32 v{s+4}, v{s+4}, v{s+5}")
        a(f"v_cvt_pk_bf16_f32 v{s+5}, v{s+6}, v{s+7}")
        a(f"ds_write_b64 v{ast}, {vr(s,2)} offset:{b*32*176}")
        a(f"ds_write_b64 v{ast2}, {vr(s+4,2)} offset:{b*32*176 + 32}")
    a("s_waitcnt lgkmcnt(0)")
    a("s_barrier")
    if os.environ.get("STAMPA"): a.stamp(7)
    store_tile(a, t, OIMG, 160, 42, 24, 176)
```

```python
import os
from asmlib import *
from gen import srd, swap23, S, D, F, KT, OHP, BIG

MBOFF = 0x1000000

def poll(a, which, t0, t1):
    L = a.newlabel("PL"); Ld = a.newlabel("PD"); Ls = a.newlabel("PS")
    a("s_cmp_lg_u32 s39, 0")
    a(f"s_cbranch_scc1 {Ls}")
    a(f"v_mov_b32 v{t0}, s56")
    a("s_mov_b64 exec, 1")
    a("s_mov_b32 s58, 200000")
    a.label(L)
    a(f"buffer_load_dword v{t1}, v{t0}, s[52:55], 0 offen offset:{which*4} sc1")
    a("s_waitcnt vmcnt(0)")
    a(f"v_cmp_gt_u32 vcc, s59, v{t1}")
    a("s_nop 4")
    a(f"s_cbranch_vccz {Ld}")
    a(f"s_sleep {os.environ.get('POLLS','2')}")
    a("s_sub_u32 s58, s58, 1")
    a("s_cmp_lg_u32 s58, 0")
    a(f"s_cbranch_scc1 {L}")
    a.label(Ld)
    a("s_mov_b64 exec, -1")
    a.label(Ls)

def notify(a, attn, t):
    t0, t1, t2, t3, t4, t5, t6, t7 = t
    a("s_load_dwordx4 s[48:51], s[0:1], 72")
    a("s_waitcnt lgkmcnt(0)")
    srd(a, 52, 48, 49, 256)
    L = a.newlabel("NI"); Ld = a.newlabel("ND")
    a(f"v_mov_b32 v{t0}, 0")
    a("s_mov_b64 exec, 1")
    a("s_mov_b32 s58, 200000")
    a("s_movk_i32 s59, 256")
    a.label(L)
    a(f"buffer_load_dword v{t1}, v{t0}, s[52:55], 0 offen sc1")
    a("s_waitcnt vmcnt(0)")
    a(f"v_cmp_gt_u32 vcc, s59, v{t1}")
    a("s_nop 4")
    a(f"s_cbranch_vccz {Ld}")
    a("s_sleep 8")
    a("s_sub_u32 s58, s58, 1")
    a("s_cmp_lg_u32 s58, 0")
    a(f"s_cbranch_scc1 {L}")
    a.label(Ld)
    a("s_mov_b64 exec, -1")
    a(f"s_add_u32 s50, s50, {MBOFF}")
    a("s_addc_u32 s51, s51, 0")
    srd(a, 52, 50, 51, 256 * 128)
    a(f"v_and_b32 v{t0}, 31, v1")
    a(f"v_mul_u32_u24 v{t1}, 205, v{t0}")
    a(f"v_lshrrev_b32 v{t1}, 11, v{t1}")
    a(f"v_mul_u32_u24 v{t2}, 10, v{t1}")
    a(f"v_sub_u32 v{t2}, v{t0}, v{t2}")
    a("s_lshl_b32 s46, s37, 2")
    a("s_mul_i32 s47, s46, 171"); a("s_lshr_b32 s47, s47, 9")
    a("s_add_u32 s46, s46, 3")
    a("s_mul_i32 s46, s46, 171"); a("s_lshr_b32 s46, s46, 9")
    a("s_min_u32 s46, s46, 13")
    a(f"v_mul_u32_u24 v{t3}, 171, v{t2}")
    a(f"v_lshrrev_b32 v{t3}, 9, v{t3}")
    a(f"v_mul_u32_u24 v{t4}, 61, v{t3}")
    a(f"v_add_u32 v{t4}, v{t4}, v{t2}")
    a(f"v_subrev_u32 v{t5}, 6, v{t2}")
    a(f"v_lshrrev_b32 v{t6}, 1, v{t5}")
    a(f"v_and_b32 v{t5}, 1, v{t5}")
    a(f"v_lshl_add_u32 v{t5}, v{t6}, 6, v{t5}")
    a(f"v_add_u32 v{t5}, 3, v{t5}")
    a(f"v_cmp_gt_u32 s[56:57], 6, v{t2}")
    a("s_nop 1")
    a(f"v_cndmask_b32 v{t7}, v{t5}, v{t4}, s[56:57]")
    a(f"v_add_u32 v{t3}, s47, v{t1}")
    a(f"v_mul_u32_u24 v{t4}, 5, v{t3}")
    a(f"v_add_u32 v{t4}, v{t4}, v{t7}")
    a(f"v_lshl_add_u32 v{t5}, v{t3}, 1, v{t7}")
    a(f"v_add_u32 v{t5}, {60 - 24 - 3}, v{t5}")
    a(f"v_cmp_gt_u32 s[48:49], 12, v{t3}")
    a("s_nop 1")
    a(f"v_cndmask_b32 v{t4}, v{t5}, v{t4}, s[48:49]")
    a("s_orn2_b64 s[48:49], s[48:49], s[56:57]")
    a(f"v_cmp_ge_u32 vcc, s46, v{t3}")
    a("s_and_b64 s[48:49], s[48:49], vcc")
    a(f"v_cmp_gt_u32 vcc, 30, v{t0}")
    a("s_and_b64 s[48:49], s[48:49], vcc")
    a(f"v_add_u32 v{t4}, 128, v{t4}")
    a("s_lshl_b32 s46, s37, 1")
    a("s_sub_u32 s46, s46, 18")
    a(f"v_add_u32 v{t3}, s46, v{t1}")
    a(f"v_mul_u32_u24 v{t5}, 3, v{t3}")
    a(f"v_add_u32 v{t5}, v{t5}, v{t7}")
    a(f"v_mul_u32_u24 v{t6}, 5, v{t3}")
    a(f"v_add_u32 v{t6}, v{t6}, v{t7}")
    a(f"v_subrev_u32 v{t6}, 6, v{t6}")
    a(f"v_cmp_gt_u32 s[50:51], 3, v{t3}")
    a("s_nop 1")
    a(f"v_cndmask_b32 v{t5}, v{t6}, v{t5}, s[50:51]")
    a("s_orn2_b64 s[50:51], s[56:57], s[50:51]")
    a(f"v_cmp_gt_u32 vcc, 2, v{t1}")
    a("s_and_b64 s[50:51], s[50:51], vcc")
    a("s_cmp_ge_u32 s37, 9")
    a("s_cselect_b64 s[50:51], s[50:51], 0")
    a("s_mov_b32 s49, s51")
    a(f"v_cmp_gt_u32 vcc, 32, v1")
    a("s_nop 1")
    a(f"v_cndmask_b32 v{t4}, v{t5}, v{t4}, vcc")
    a(f"v_lshlrev_b32 v{t4}, 7, v{t4}")
    a(f"v_mov_b32 v{t1}, 1")

def notify_fire(a, attn, t):
    t0, t1, t2, t3, t4, t5, t6, t7 = t
    a("s_mov_b64 exec, s[48:49]")
    a(f"buffer_atomic_add v{t1}, v{t4}, s[52:55], 0 offen offset:{4 if attn else 0}")
    a("s_mov_b64 exec, -1")

def k2_body(a, MT):
    from gen_k1 import interleave
    NRB = MT // 16
    RW = NRB // 2
    NAI = MT // 32
    NCH = 34
    WOFF = MT * 128
    STG = WOFF + 8192
    NST = min(9, 151552 // STG)
    order = list(range(10, 34)) + list(range(10))
    a.vm_reset()
    a.vm.append("st")
    a("s_load_dwordx2 s[4:5], s[0:1], 0")
    a("s_load_dwordx2 s[6:7], s[0:1], 16")
    a("s_load_dwordx2 s[28:29], s[0:1], 48")
    a("s_load_dwordx2 s[30:31], s[0:1], 56")
    a("s_load_dwordx4 s[32:35], s[0:1], 64")
    a("s_load_dwordx2 s[60:61], s[0:1], 80")
    a("s_lshl_b32 s36, s38, 4")
    a("s_add_u32 s36, s36, s37")
    a("s_and_b32 s62, s36, 63")
    a("s_lshr_b32 s63, s36, 6")
    if MT == 96:
        a("s_mul_i32 s46, s62, 205"); a("s_lshr_b32 s46, s46, 10")
        a("s_mul_i32 s47, s46, 5"); a("s_sub_u32 s47, s62, s47")
        a("s_sub_u32 s48, s62, 60")
        a("s_lshr_b32 s49, s48, 1"); a("s_add_u32 s49, s49, 12")
        a("s_and_b32 s48, s48, 1"); a("s_add_u32 s48, s48, 3")
        a("s_cmp_lt_u32 s62, 60")
        a("s_cselect_b32 s46, s46, s49")
        a("s_cselect_b32 s47, s47, s48")
        a("s_mul_i32 s40, s46, 96")
    else:
        a("s_mul_i32 s46, s62, 171"); a("s_lshr_b32 s46, s46, 9")
        a("s_mul_i32 s47, s46, 3"); a("s_sub_u32 s47, s62, s47")
        a("s_sub_u32 s48, s62, 9")
        a("s_mul_i32 s49, s48, 205"); a("s_lshr_b32 s49, s49, 10")
        a("s_mul_i32 s50, s49, 5"); a("s_sub_u32 s48, s48, s50")
        a("s_add_u32 s49, s49, 3")
        a("s_cmp_lt_u32 s62, 9")
        a("s_cselect_b32 s46, s46, s49")
        a("s_cselect_b32 s47, s47, s48")
        a("s_lshl_b32 s40, s46, 6")
        a("s_add_u32 s40, s40, 1152")
    a("s_mul_i32 s48, s63, 3"); a("s_add_u32 s48, s48, s47")
    a("s_lshl_b32 s49, s63, 1"); a("s_add_u32 s49, s49, s47"); a("s_add_u32 s49, s49, 3")
    a("s_cmp_lt_u32 s47, 3")
    a("s_cselect_b32 s47, s48, s49")
    a("s_lshl_b32 s42, s47, 7")
    a("s_lshr_b32 s56, s40, 7")
    a(f"s_add_u32 s57, s40, {MT-1}")
    a("s_lshr_b32 s57, s57, 7")
    a("s_sub_u32 s59, s57, s56")
    a("s_lshl_b32 s59, s59, 3")
    a("s_add_u32 s59, s59, 8")
    a(f"s_add_u32 s56, s36, {128 if MT == 96 else 0}")
    a("s_lshl_b32 s56, s56, 7")
    R = RegAlloc(4, 256)
    v_lane, v_m, v_g = 1, 2, 3
    t0 = R.alloc(1); t1 = R.alloc(1); t2 = R.alloc(1); t3 = R.alloc(1)
    v_doff = R.alloc(NAI + 2)
    v_ab = R.alloc(2); v_wb = R.alloc(2)
    v_ac = R.alloc(2); v_wc = R.alloc(2)
    v_eoff = R.alloc(RW); v_boff = R.alloc(1)
    v_x = R.alloc(4 * RW, 2); v_b2 = R.alloc(4, 2)
    acc = R.alloc(8 * RW, 4)
    Af = R.alloc(2 * 8 * RW, 4)
    Wf = R.alloc(2 * 16, 4)
    a("s_and_b32 s43, s39, 1")
    a("s_lshr_b32 s44, s39, 1")
    a("s_lshl_b32 s45, s39, 3")
    a(f"v_lshrrev_b32 v{t0}, 3, v{v_lane}")
    a(f"v_add_u32 v{t0}, s45, v{t0}")
    a(f"v_and_b32 v{t1}, 7, v{v_lane}")
    a(f"v_and_b32 v{t2}, 7, v{t0}")
    a(f"v_xor_b32 v{t1}, v{t1}, v{t2}")
    a(f"v_lshlrev_b32 v{t1}, 4, v{t1}")
    a(f"s_movk_i32 s41, {OHP}")
    for i in range(NAI):
        a(f"v_add_u32 v{t2}, {32*i}, v{t0}")
        a(f"v_add_u32 v{t2}, s40, v{t2}")
        a(f"v_mul_lo_u32 v{t2}, v{t2}, s41")
        a(f"v_add_u32 v{v_doff+i}, v{t2}, v{t1}")
    for i in range(2):
        d = v_doff + NAI + i
        a(f"v_add_u32 v{t2}, {32*i}, v{t0}")
        a(f"v_bfe_u32 v{t1}, v{t2}, 1, 2")
        a(f"v_bfe_u32 v{t3}, v{v_lane}, 1, 2")
        a(f"v_xor_b32 v{t1}, v{t1}, v{t3}")
        a(f"v_and_b32 v{t3}, 1, v{v_lane}")
        a(f"v_lshl_or_b32 v{t1}, v{t1}, 1, v{t3}")
        swap23(a, d, t2, t3)
        a(f"v_mul_u32_u24 v{d}, 1280, v{d}")
        a(f"v_lshl_add_u32 v{d}, v{t1}, 4, v{d}")
        a(f"v_add_u32 v{d}, s42, v{d}")
    a(f"s_mul_i32 s46, s43, {RW*16*128}")
    a(f"v_and_b32 v{t0}, 7, v{v_m}")
    a(f"v_lshl_add_u32 v{t2}, v{v_m}, 7, s46")
    for hh in range(2):
        a(f"v_add_u32 v{t1}, {4*hh}, v{v_g}")
        a(f"v_xor_b32 v{t1}, v{t1}, v{t0}")
        a(f"v_lshl_add_u32 v{v_ab+hh}, v{t1}, 4, v{t2}")
    a(f"v_lshrrev_b32 v{t0}, 1, v{v_g}")
    a(f"v_lshlrev_b32 v{t0}, 4, v{t0}")
    a(f"v_and_b32 v{t1}, 1, v{v_g}")
    a(f"v_lshl_add_u32 v{t0}, v{t1}, 2, v{t0}")
    a(f"v_bfe_u32 v{t1}, v{v_lane}, 2, 2")
    a(f"v_add_u32 v{t0}, v{t0}, v{t1}")
    a(f"v_bfe_u32 v{t1}, v{t0}, 1, 2")
    a(f"v_lshlrev_b32 v{t0}, 7, v{t0}")
    a(f"v_and_b32 v{t2}, 3, v{v_lane}")
    a(f"v_lshl_add_u32 v{t0}, v{t2}, 3, v{t0}")
    a(f"v_add_u32 v{t0}, {WOFF}, v{t0}")
    a("s_lshl_b32 s46, s44, 1")
    for nb in range(2):
        a(f"s_add_u32 s47, s46, {nb}")
        a(f"v_xor_b32 v{t2}, s47, v{t1}")
        a(f"v_lshl_add_u32 v{v_wb+nb}, v{t2}, 5, v{t0}")
    a("s_lshl_b32 s46, s44, 6")
    a("s_add_u32 s46, s46, s42")
    a(f"v_lshl_add_u32 v{v_boff}, v{v_g}, 3, s46")
    a(f"s_mul_i32 s47, s43, {RW*16}")
    a("s_add_u32 s47, s47, s40")
    for mb in range(RW):
        a(f"v_add_u32 v{t0}, s47, v{v_m}")
        if mb: a(f"v_add_u32 v{t0}, {16*mb}, v{t0}")
        a(f"v_mul_u32_u24 v{t0}, 1280, v{t0}")
        a(f"v_add_u32 v{v_eoff+mb}, v{t0}, v{v_boff}")
    for i in range(8 * RW):
        a(f"v_mov_b32 v{acc+i}, 0")
    a("s_lshl_b32 s45, s39, 10")
    a("s_waitcnt lgkmcnt(0)")
    srd(a, 8, 60, 61, S * OHP)
    srd(a, 12, 6, 7, D * 1280)
    srd(a, 48, 28, 29, F * 1280)
    srd(a, 16, 4, 5, S * D * 2)
    srd(a, 20, 32, 33, S * D * 2)
    srd(a, 24, 30, 31, D * 2)
    a(f"s_add_u32 s60, s60, {MBOFF}")
    a("s_addc_u32 s61, s61, 0")
    srd(a, 52, 60, 61, 256 * 128)
    LDF = os.environ.get("OHLD", "sc1")

    def issue(p, parts="AW"):
        c = order[p]
        st = (p % NST) * STG
        tag = ("D", p)
        if "A" in parts:
            a(f"s_movk_i32 s46, {c*128}")
            for i in range(NAI):
                a(f"s_add_u32 m0, s45, {st + i*4096}")
                a("s_nop 0")
                a.vmem(f"buffer_load_dwordx4 v{v_doff+i}, s[8:11], s46 offen {LDF} lds", tag)
        if "W" in parts:
            wsrd, cc = ("s[12:15]", c) if c < 10 else ("s[48:51]", c - 10)
            a(f"s_mov_b32 s46, {cc*64*1280}")
            for i in range(2):
                a(f"s_add_u32 m0, s45, {st + WOFF + i*4096}")
                a("s_nop 0")
                a.vmem(f"buffer_load_dwordx4 v{v_doff+NAI+i}, {wsrd}, s46 offen lds", tag)
    def setaddr(p):
        st = (p % NST) * STG
        for j in range(2):
            a(f"v_add_u32 v{v_ac+j}, {st}, v{v_ab+j}")
            a(f"v_add_u32 v{v_wc+j}, {st}, v{v_wb+j}")
    def reads(b):
        for kh in range(2):
            for nb in range(2):
                for q in range(2):
                    a(f"ds_read_b64_tr_b16 {vr(Wf+16*b+8*kh+4*nb+2*q,2)}, v{v_wc+nb} offset:{q*1024+kh*4096}")
            for mb in range(RW):
                a(f"ds_read_b128 {vr(Af+8*RW*b+4*RW*kh+4*mb,4)}, v{v_ac+kh} offset:{mb*2048}")
    def mfmas(b, kh):
        for nb in range(2):
            for mb in range(RW):
                c = acc + 4 * (nb * RW + mb)
                a(f"v_mfma_f32_16x16x32_bf16 {vr(c,4)}, {vr(Wf+16*b+8*kh+4*nb,4)}, {vr(Af+8*RW*b+4*RW*kh+4*mb,4)}, {vr(c,4)}")
    PRE = int(os.environ.get("F_PRE", 4)); RAMP = 3
    for p in range(PRE):
        issue(p, "W")
    for mb in range(RW):
        for nb in range(2):
            a.vmem(f"buffer_load_dwordx2 {vr(v_x+4*mb+2*nb,2)}, v{v_eoff+mb}, s[16:19], 0 offen offset:{32*nb}", "xb")
    for nb in range(2):
        a.vmem(f"buffer_load_dwordx2 {vr(v_b2+2*nb,2)}, v{v_boff}, s[24:27], 0 offen offset:{32*nb}", "xb")
    a.vm_wait("st")
    a("s_barrier")
    a.trace_mark(1)
    poll(a, 0, t0, t1)
    if os.environ.get("POLLBOTH"):
        poll(a, 1, t0, t1)
    a("s_barrier")
    a.stamp(3)
    a.trace_mark(2)
    nxt = [PRE]
    polled = [bool(os.environ.get('POLLBOTH'))]
    def issue_next(lim):
        if nxt[0] < min(lim, NCH):
            if order[nxt[0]] < 10 and not polled[0]:
                return
            issue(nxt[0]); nxt[0] += 1
    for p in range(PRE):
        issue(p, "A")
    a.vm_wait(("D", 0))
    a("s_barrier")
    a.stamp(4)
    setaddr(0)
    reads(0)
    for p in range(NCH):
        a.comment(f"k2 pos {p}")
        b = p & 1
        side = []
        if p + 1 < NCH:
            a.vm_wait(("D", p + 1), "lgkmcnt(0)")
            if not polled[0] and nxt[0] < NCH and order[nxt[0]] < 10 and nxt[0] < p + NST:
                a.stamp(5)
                poll(a, 1, t0, t1)
                a.stamp(6)
                a.trace_mark(3)
                polled[0] = True
            a("s_barrier")
            a.capture()
            setaddr(p + 1)
            reads(1 - b)
            for _ in range(RAMP):
                issue_next(p + NST)
            side = a.release()
        else:
            a("s_waitcnt lgkmcnt(0)")
        a.capture()
        mfmas(b, 0)
        mfmas(b, 1)
        mf = a.release()
        interleave(a, mf, side)
    a("s_waitcnt vmcnt(0)")
    a("s_nop 7")
    for nb in range(2):
        for mb in range(RW):
            c = acc + 4 * (nb * RW + mb)
            for h in range(2):
                a(f"v_lshlrev_b32 v{t0}, 16, v{v_x+4*mb+2*nb+h}")
                a(f"v_and_b32 v{t1}, 0xffff0000, v{v_x+4*mb+2*nb+h}")
                a(f"v_lshlrev_b32 v{t2}, 16, v{v_b2+2*nb+h}")
                a(f"v_and_b32 v{t3}, 0xffff0000, v{v_b2+2*nb+h}")
                a(f"v_add_f32 v{t0}, v{t0}, v{t2}")
                a(f"v_add_f32 v{t1}, v{t1}, v{t3}")
                a(f"v_add_f32 v{c+2*h}, v{c+2*h}, v{t0}")
                a(f"v_add_f32 v{c+2*h+1}, v{c+2*h+1}, v{t1}")
            a(f"v_cvt_pk_bf16_f32 v{c}, v{c}, v{c+1}")
            a(f"v_cvt_pk_bf16_f32 v{c+1}, v{c+2}, v{c+3}")
            a(f"buffer_store_dwordx2 {vr(c,2)}, v{v_eoff+mb}, s[20:23], 0 offen offset:{32*nb}")
    return R.cur, NST * STG
```

```python
import sys, os
from asmlib import *

S, D, F = 2048, 640, 1536
KT = D + F
OHP = int(os.environ.get("OHP", KT * 2))
NAME = "parallel_sum__sliding_local_dilated__mixer_channel_mlp__prompt"
BIG = 0x7ff00000

def srd(a, d, lo, hi, nbytes):
    a(f"s_mov_b32 s{d}, s{lo}")
    a(f"s_and_b32 s{d+1}, s{hi}, 0xffff")
    a(f"s_mov_b32 s{d+2}, {nbytes}")
    a(f"s_mov_b32 s{d+3}, 0x00020000")

def swap23(a, dst, src, t):
    a(f"v_and_b32 v{dst}, 0xfffffff3, v{src}")
    a(f"v_and_b32 v{t}, 4, v{src}")
    a(f"v_lshl_or_b32 v{dst}, v{t}, 1, v{dst}")
    a(f"v_and_b32 v{t}, 8, v{src}")
    a(f"v_lshrrev_b32 v{t}, 1, v{t}")
    a(f"v_or_b32 v{dst}, v{dst}, v{t}")

def gen_k2(a):
    NST = int(os.environ.get("K2_NST", 7))
    MT = 82
    NCH = 34
    STG = 20480
    WOFF = 12288
    a.vm_reset()
    a.raw(".globl k2_kernel\n.p2align 8\n.type k2_kernel,@function\nk2_kernel:")
    a("s_cmp_ge_u32 s2, 256")
    a("s_cbranch_scc1 K2_END")
    a("s_and_b32 s36, s2, 7")
    a("s_lshr_b32 s37, s2, 3")
    a("s_lshl_b32 s36, s36, 5")
    a("s_add_u32 s36, s36, s37")
    if os.environ.get("K2_LIN"): a("s_mov_b32 s36, s2")
    a("s_cmp_ge_u32 s36, 250")
    a("s_cbranch_scc1 K2_END")
    a.stamp(0)
    a.trace_start()
    a("s_load_dwordx2 s[4:5], s[0:1], 0")
    a("s_load_dwordx2 s[6:7], s[0:1], 16")
    a("s_load_dwordx2 s[28:29], s[0:1], 48")
    a("s_load_dwordx2 s[30:31], s[0:1], 56")
    a("s_load_dwordx2 s[32:33], s[0:1], 64")
    a("s_load_dwordx2 s[34:35], s[0:1], 80")
    a("s_mul_i32 s37, s36, 205")
    a("s_lshr_b32 s37, s37, 11")
    a("s_mul_i32 s38, s37, 10")
    a("s_sub_u32 s38, s36, s38")
    a(f"s_mul_i32 s40, s37, {MT}")
    a("s_lshl_b32 s42, s38, 7")
    R = RegAlloc(0, 256)
    v_tid = R.alloc(1)
    v_lane = R.alloc(1); v_m = R.alloc(1); v_g = R.alloc(1)
    t0 = R.alloc(1); t1 = R.alloc(1); t2 = R.alloc(1); t3 = R.alloc(1)
    v_doff = R.alloc(5)
    v_ab = R.alloc(2); v_wb = R.alloc(2)
    v_ac = R.alloc(2); v_wc = R.alloc(2)
    v_eoff = R.alloc(3); v_boff = R.alloc(1)
    v_x = R.alloc(12, 2); v_b2 = R.alloc(4, 2)
    acc = R.alloc(24, 4)
    Af = R.alloc(2 * 24, 4)
    Wf = R.alloc(2 * 16, 4)
    a(f"v_lshrrev_b32 v{t0}, 6, v0")
    a(f"v_and_b32 v{v_lane}, 63, v0")
    a(f"v_readfirstlane_b32 s39, v{t0}")
    a(f"v_and_b32 v{v_m}, 15, v{v_lane}")
    a(f"v_lshrrev_b32 v{v_g}, 4, v{v_lane}")
    a("s_and_b32 s43, s39, 1")
    a("s_lshr_b32 s44, s39, 1")
    a("s_lshl_b32 s45, s39, 3")
    a(f"v_lshrrev_b32 v{t0}, 3, v{v_lane}")
    a(f"v_add_u32 v{t0}, s45, v{t0}")
    a(f"v_and_b32 v{t1}, 7, v{v_lane}")
    a(f"v_and_b32 v{t2}, 7, v{t0}")
    a(f"v_xor_b32 v{t1}, v{t1}, v{t2}")
    a(f"v_lshlrev_b32 v{t1}, 4, v{t1}")
    a(f"s_movk_i32 s41, {OHP}")
    a(f"v_mov_b32 v{t3}, {BIG}")
    for i in range(3):
        a(f"v_add_u32 v{t2}, {32*i}, v{t0}")
        a(f"v_cmp_gt_u32 vcc, {MT}, v{t2}")
        a(f"v_add_u32 v{t2}, s40, v{t2}")
        a(f"v_mul_lo_u32 v{t2}, v{t2}, s41")
        a(f"v_add_u32 v{t2}, v{t2}, v{t1}")
        a(f"v_cndmask_b32 v{v_doff+i}, v{t3}, v{t2}, vcc")
    for i in range(2):
        a(f"v_add_u32 v{t2}, {32*i}, v{t0}")
        a(f"v_bfe_u32 v{t1}, v{t2}, 1, 2")
        a(f"v_bfe_u32 v{t3}, v{v_lane}, 1, 2")
        a(f"v_xor_b32 v{t1}, v{t1}, v{t3}")
        a(f"v_and_b32 v{t3}, 1, v{v_lane}")
        a(f"v_lshl_or_b32 v{t1}, v{t1}, 1, v{t3}")
        swap23(a, v_doff + 3 + i, t2, t3)
        a(f"v_mul_u32_u24 v{v_doff+3+i}, 1280, v{v_doff+3+i}")
        a(f"v_lshl_add_u32 v{v_doff+3+i}, v{t1}, 4, v{v_doff+3+i}")
        a(f"v_add_u32 v{v_doff+3+i}, s42, v{v_doff+3+i}")
    a.capture()
    a(f"s_mul_i32 s46, s43, {48*128}")
    a(f"v_and_b32 v{t0}, 7, v{v_m}")
    a(f"v_lshl_add_u32 v{t2}, v{v_m}, 7, s46")
    for hh in range(2):
        a(f"v_add_u32 v{t1}, {4*hh}, v{v_g}")
        a(f"v_xor_b32 v{t1}, v{t1}, v{t0}")
        a(f"v_lshl_add_u32 v{v_ab+hh}, v{t1}, 4, v{t2}")
    a(f"v_lshrrev_b32 v{t0}, 1, v{v_g}")
    a(f"v_lshlrev_b32 v{t0}, 4, v{t0}")
    a(f"v_and_b32 v{t1}, 1, v{v_g}")
    a(f"v_lshl_add_u32 v{t0}, v{t1}, 2, v{t0}")
    a(f"v_bfe_u32 v{t1}, v{v_lane}, 2, 2")
    a(f"v_add_u32 v{t0}, v{t0}, v{t1}")
    a(f"v_bfe_u32 v{t1}, v{t0}, 1, 2")
    a(f"v_lshlrev_b32 v{t0}, 7, v{t0}")
    a(f"v_and_b32 v{t2}, 3, v{v_lane}")
    a(f"v_lshl_add_u32 v{t0}, v{t2}, 3, v{t0}")
    a(f"v_add_u32 v{t0}, {WOFF}, v{t0}")
    a("s_lshl_b32 s46, s44, 1")
    for nb in range(2):
        a(f"s_add_u32 s47, s46, {nb}")
        a(f"v_xor_b32 v{t2}, s47, v{t1}")
        a(f"v_lshl_add_u32 v{v_wb+nb}, v{t2}, 5, v{t0}")
    a("s_lshl_b32 s46, s44, 6")
    a("s_add_u32 s46, s46, s42")
    a(f"v_lshl_add_u32 v{v_boff}, v{v_g}, 3, s46")
    a("s_mul_i32 s47, s43, 48")
    a(f"v_mov_b32 v{t3}, {BIG}")
    for mb in range(3):
        a(f"v_add_u32 v{t0}, s47, v{v_m}")
        if mb: a(f"v_add_u32 v{t0}, {16*mb}, v{t0}")
        a(f"v_cmp_gt_u32 vcc, {MT}, v{t0}")
        a(f"v_add_u32 v{t0}, s40, v{t0}")
        a(f"v_mul_u32_u24 v{t0}, 1280, v{t0}")
        a(f"v_add_u32 v{t0}, v{t0}, v{v_boff}")
        a(f"v_cndmask_b32 v{v_eoff+mb}, v{t3}, v{t0}, vcc")
    for i in range(24):
        a(f"v_mov_b32 v{acc+i}, 0")
    deferred = a.release()
    a("s_lshl_b32 s45, s39, 10")
    a("s_waitcnt lgkmcnt(0)")
    a.stamp(1)
    srd(a, 8, 34, 35, S * OHP)
    srd(a, 12, 6, 7, D * 1280)
    srd(a, 48, 28, 29, F * 1280)
    srd(a, 16, 4, 5, S * D * 2)
    srd(a, 20, 32, 33, S * D * 2)
    srd(a, 24, 30, 31, D * 2)

    def issue(c):
        st = (c % NST) * STG
        a(f"s_movk_i32 s46, {c*128}")
        for i in range(3):
            a(f"s_add_u32 m0, s45, {st + i*4096}")
            a("s_nop 0")
            if os.environ.get("NOA"): continue
            a.vmem(f"buffer_load_dwordx4 v{v_doff+i}, s[8:11], s46 offen lds", ("D", c))
        wsrd, cc = ("s[12:15]", c) if c < 10 else ("s[48:51]", c - 10)
        a(f"s_mov_b32 s46, {cc*64*1280}")
        for i in range(2):
            a(f"s_add_u32 m0, s45, {st + WOFF + i*4096}")
            a("s_nop 0")
            if os.environ.get("NOW"): continue
            a.vmem(f"buffer_load_dwordx4 v{v_doff+3+i}, {wsrd}, s46 offen lds", ("D", c))
    def setaddr(c):
        st = (c % NST) * STG
        for j in range(2):
            a(f"v_add_u32 v{v_ac+j}, {st}, v{v_ab+j}")
            a(f"v_add_u32 v{v_wc+j}, {st}, v{v_wb+j}")
    def reads(b):
        for kh in range(2):
            for nb in range(2):
                for q in range(2):
                    if os.environ.get("NORW"): continue
                    a(f"ds_read_b64_tr_b16 {vr(Wf+16*b+8*kh+4*nb+2*q,2)}, v{v_wc+nb} offset:{q*1024+kh*4096}")
            for mb in range(3):
                if os.environ.get("NORA"): continue
                a(f"ds_read_b128 {vr(Af+24*b+12*kh+4*mb,4)}, v{v_ac+kh} offset:{mb*2048}")
    def mfmas(b, kh):
        if os.environ.get("NOMFMA"): return
        for nb in range(2):
            for mb in range(3):
                c = acc + 4 * (nb * 3 + mb)
                a(f"v_mfma_f32_16x16x32_bf16 {vr(c,4)}, {vr(Wf+16*b+8*kh+4*nb,4)}, {vr(Af+24*b+12*kh+4*mb,4)}, {vr(c,4)}")
    PRE = int(os.environ.get("K2_PRE", 3)); RAMP = int(os.environ.get("K2_RAMP", 3))
    nxt = [0]
    def issue_next(lim):
        if nxt[0] < min(lim, NCH):
            issue(nxt[0]); nxt[0] += 1
    for c in range(PRE):
        issue_next(NST - 1)
    for ins in deferred: a(ins)
    for mb in range(3):
        for nb in range(2):
            a.vmem(f"buffer_load_dwordx2 {vr(v_x+4*mb+2*nb,2)}, v{v_eoff+mb}, s[16:19], 0 offen offset:{32*nb}", "xb")
    for nb in range(2):
        a.vmem(f"buffer_load_dwordx2 {vr(v_b2+2*nb,2)}, v{v_boff}, s[24:27], 0 offen offset:{32*nb}", "xb")
    a.vm_wait(("D", 0))
    a("s_barrier")
    a.stamp(2)
    setaddr(0)
    reads(0)
    from gen_k1 import interleave
    for c in range(NCH):
        a.comment(f"chunk {c}")
        b = c & 1
        side = []
        if c + 1 < NCH:
            a.vm_wait(("D", c + 1), "lgkmcnt(0)")
            if not os.environ.get("NOBAR"): a("s_barrier")
            a.capture()
            setaddr(c + 1)
            reads(1 - b)
            for _ in range(RAMP):
                issue_next(c + NST)
            side = a.release()
        else:
            a("s_waitcnt lgkmcnt(0)")
        a.capture()
        mfmas(b, 0)
        mfmas(b, 1)
        mf = a.release()
        if mf:
            interleave(a, mf, side)
        else:
            for ins in side: a(ins)
    a.stamp(3)
    a.vm_wait("xb")
    a("s_nop 7")
    for nb in range(2):
        for mb in range(3):
            c = acc + 4 * (nb * 3 + mb)
            for h in range(2):
                a(f"v_lshlrev_b32 v{t0}, 16, v{v_x+4*mb+2*nb+h}")
                a(f"v_and_b32 v{t1}, 0xffff0000, v{v_x+4*mb+2*nb+h}")
                a(f"v_lshlrev_b32 v{t2}, 16, v{v_b2+2*nb+h}")
                a(f"v_and_b32 v{t3}, 0xffff0000, v{v_b2+2*nb+h}")
                a(f"v_add_f32 v{t0}, v{t0}, v{t2}")
                a(f"v_add_f32 v{t1}, v{t1}, v{t3}")
                a(f"v_add_f32 v{c+2*h}, v{c+2*h}, v{t0}")
                a(f"v_add_f32 v{c+2*h+1}, v{c+2*h+1}, v{t1}")
            a(f"v_cvt_pk_bf16_f32 v{c}, v{c}, v{c+1}")
            a(f"v_cvt_pk_bf16_f32 v{c+1}, v{c+2}, v{c+3}")
            a(f"buffer_store_dwordx2 {vr(c,2)}, v{v_eoff+mb}, s[20:23], 0 offen offset:{32*nb}")
    a.stamp(4)
    a("s_waitcnt vmcnt(0)") if os.environ.get("STAMP") else None
    a.stamp(5)
    a.stamp_dump(6, t0)
    a.trace_end(24, 1)
    a.label("K2_END")
    a("s_endpgm")
    return R.cur, NST * STG

def kd(name, nv, ns=102):
    nv4 = (nv + 3) // 4 * 4
    return f""".amdhsa_kernel {name}
  .amdhsa_next_free_vgpr {nv}
  .amdhsa_next_free_sgpr {ns}
  .amdhsa_accum_offset {nv4}
  .amdhsa_group_segment_fixed_size 0
  .amdhsa_kernarg_size 88
  .amdhsa_user_sgpr_count 2
  .amdhsa_user_sgpr_kernarg_segment_ptr 1
  .amdhsa_system_sgpr_workgroup_id_x 1
.end_amdhsa_kernel
"""

def main():
    out = sys.argv[1] if len(sys.argv) > 1 else "k.s"
    which = sys.argv[2] if len(sys.argv) > 2 else "k2"
    a = Asm()
    kds = []; launches = []
    a.raw('.amdgcn_target "amdgcn-amd-amdhsa--gfx950"\n.text')
    if "k1" in which:
        from gen_k1 import gen_k1
        nv, lds = gen_k1(a)
        kds.append(kd("k1_kernel", nv)); launches.append(f"; @launch kernel=k1_kernel grid=(256,1,1) block=(512,1,1) lds={lds}")
    if "k2" in which:
        nv, lds = gen_k2(a)
        kds.append(kd("k2_kernel", nv)); launches.append(f"; @launch kernel=k2_kernel grid=(256,1,1) block=(256,1,1) lds={lds}")
    hdr = "\n".join(launches) + "\n"
    txt = hdr + a.text() + '.section .rodata,"a"\n.p2align 6\n' + "".join(k if i == 0 else ".p2align 6\n" + k for i, k in enumerate(kds))
    if os.environ.get("SINGLE"):
        txt = txt.replace("; @launch kernel=k1_kernel grid", "; @launch grid").replace("k1_kernel", NAME + "_kernel")
    open(out, "w").write(txt)

if __name__ == "__main__":
    main()
```

```python
import os
from asmlib import *
from gen import srd, swap23, S, D, F, KT, OHP, BIG

NKS = 20
QP = 488

def bf16r(a, d, s):
    a(f"v_cvt_pk_bf16_f32 v{d}, v{s}, v{s}")
    a(f"v_lshlrev_b32 v{d}, 16, v{d}")

def interleave(a, mf, side):
    n = len(mf); k = len(side); si = 0
    for i, m in enumerate(mf):
        a(m)
        tgt = (k * (i + 1) + n - 1) // n
        while si < min(tgt, k):
            a(side[si]); si += 1

def store_tile(a, t, lds_base, rowb, scol, regs, pitch):
    t0, t1, t2, t3, t4, t5, t6, t7 = t
    cpr = rowb // 16
    n = 128 * cpr
    it = (n + 511) // 512
    magic = (65536 + cpr - 1) // cpr
    a(f"s_movk_i32 s51, {OHP}")
    for i in range(it):
        a(f"v_add_u32 v{t0}, {512*i}, v0")
        a(f"v_mul_u32_u24 v{t1}, {magic}, v{t0}")
        a(f"v_lshrrev_b32 v{t1}, 16, v{t1}")
        a(f"v_mul_u32_u24 v{t2}, {cpr}, v{t1}")
        a(f"v_sub_u32 v{t2}, v{t0}, v{t2}")
        a(f"v_mul_u32_u24 v{t3}, {pitch}, v{t1}")
        a(f"v_lshl_add_u32 v{t3}, v{t2}, 4, v{t3}")
        if lds_base > 60000:
            a(f"v_add_u32 v{t3}, {lds_base}, v{t3}")
            a(f"ds_read_b128 {vr(regs+4*i,4)}, v{t3}")
        else:
            a(f"ds_read_b128 {vr(regs+4*i,4)}, v{t3} offset:{lds_base}")
        a(f"v_add_u32 v{t1}, s40, v{t1}")
        a(f"v_mul_lo_u32 v{t1}, v{t1}, s51")
        a(f"v_lshl_add_u32 v{regs+4*it+i}, v{t2}, 4, v{t1}")
        if 512 * (i + 1) > n:
            a(f"v_mov_b32 v{t4}, {BIG}")
            a(f"v_cmp_gt_u32 vcc, {n}, v{t0}")
            a("s_nop 1")
            a(f"v_cndmask_b32 v{regs+4*it+i}, v{t4}, v{regs+4*it+i}, vcc")
    for i in range(it):
        a(f"s_waitcnt lgkmcnt({it-1-i})")
        a(f"buffer_store_dwordx4 {vr(regs+4*i,4)}, v{regs+4*it+i}, s[20:23], s{scol} offen {os.environ.get('STFLAG','')}")

def gen_k1(a):
    a.vm_reset()
    a.raw(".globl k1_kernel\n.p2align 8\n.type k1_kernel,@function\nk1_kernel:")
    a("s_cmp_ge_u32 s2, 256")
    a("s_cbranch_scc1 K1_END")
    a.stamp(0)
    a.trace_start()
    a("s_load_dwordx4 s[4:7], s[0:1], 0")
    a("s_load_dwordx4 s[28:31], s[0:1], 32")
    a("s_load_dwordx2 s[34:35], s[0:1], 80")
    a("s_load_dwordx2 s[74:75], s[0:1], 16")
    a("s_load_dwordx2 s[76:77], s[0:1], 48")
    a("s_and_b32 s38, s2, 7")
    a("s_lshr_b32 s37, s2, 3")
    a("s_and_b32 s36, s37, 1")
    a("s_lshr_b32 s37, s37, 1")
    if os.environ.get("MAP24"):
        a("s_and_b32 s46, s38, 1")
        a("s_lshr_b32 s47, s38, 1")
        a("s_lshr_b32 s48, s37, 3")
        a("s_and_b32 s37, s37, 7")
        a("s_lshl_b32 s46, s46, 3")
        a("s_add_u32 s37, s37, s46")
        a("s_lshl_b32 s47, s47, 1")
        a("s_add_u32 s38, s47, s48")
    a("s_lshl_b32 s40, s37, 7")
    a("v_lshrrev_b32 v4, 6, v0")
    a("v_and_b32 v1, 63, v0")
    a("v_readfirstlane_b32 s39, v4")
    a("v_and_b32 v2, 15, v1")
    a("v_lshrrev_b32 v3, 4, v1")
    a("s_lshr_b32 s43, s39, 2")
    a("s_and_b32 s44, s39, 3")
    a("s_lshl_b32 s45, s39, 10")
    if os.environ.get("CODEPF"):
        a("s_getpc_b64 s[46:47]")
        a.label("K1_PC")
        a("s_sub_u32 s46, s46, K1_PC-k1_kernel")
        a("s_subb_u32 s47, s47, 0")
        a("v_lshlrev_b32 v4, 7, v0")
        a("v_min_u32 v5, K1_END-k1_kernel, v4")
        a("global_load_dword v243, v5, s[46:47]")
        a("v_add_u32 v4, 65536, v4")
        a("v_min_u32 v5, K1_END-k1_kernel, v4")
        a("global_load_dword v243, v5, s[46:47]")
    if os.environ.get("PRIO"):
        a("s_cmp_lt_u32 s39, 4")
        a("s_cbranch_scc1 K1_NOPRIO")
        a(f"s_setprio {os.environ.get('PRIO')}")
        a.label("K1_NOPRIO")
    a("s_cmp_eq_u32 s36, 1")
    a("s_cbranch_scc1 K1_MLP")
    nv1, l1 = body(a, True)
    a("s_branch K1_END")
    a.label("K1_MLP")
    nv2, l2 = body(a, False)
    a.label("K1_END")
    a("s_endpgm")
    return max(nv1, nv2, 244 if os.environ.get('CODEPF') else 0), max(l1, l2)

def body(a, attn):
    a.vm_reset()
    P = "A" if attn else "M"
    NJW = 4 if attn else 3
    WP = 480 if attn else 384
    WG_P = 3840 if attn else 3072
    NWI = 15 if attn else 12
    NAI = 9 if attn else 8
    AROWS = 144 if attn else 128
    HOFF = 16 if attn else 0
    NW = 5 if attn else 7
    NA = 4
    AD = 2 * (NA - 1)
    WSTG = 32 * WP
    ASTG = AROWS * 128
    ARING = 0
    WRING = NA * ASTG
    DUMMY = WRING + NW * WSTG
    LDS_TOTAL = DUMMY
    assert LDS_TOTAL <= 163840, LDS_TOTAL

    R = RegAlloc(4, 256)
    v_lane, v_m, v_g = 1, 2, 3
    t = [R.alloc(1) for _ in range(8)]
    t0, t1, t2, t3, t4, t5, t6, t7 = t
    v_doff = R.alloc(5)
    v_aa = R.alloc(8)
    v_ha = R.alloc(2)
    v_wa = R.alloc(8)
    SLO = (65535 - 8 * WP) // WSTG + 1
    v_st = R.alloc(16, 4)
    v_ones = R.alloc(4, 4)
    v_b1 = R.alloc(6, 2)
    acc = R.alloc(16 * NJW, 4)
    acch = R.alloc(4 * (2 if attn else 3), 4)
    NAF = 5
    Af = R.alloc(2 * 4 * NAF, 4)
    Wf = R.alloc(2 * 4 * NJW, 4)

    a("s_mul_i32 s42, s38, %d" % (160 if attn else 384))
    a("s_movk_i32 s41, 1280")
    for i in range(3):
        a(f"s_add_u32 s46, s39, {8*i}")
        if 8 * i < NWI:
            a(f"s_lshl_b32 s47, s46, 6")
            a(f"v_add_u32 v{t0}, s47, v{v_lane}")
            if attn:
                a(f"v_mul_u32_u24 v{t1}, 2185, v{t0}")
                a(f"v_lshrrev_b32 v{t1}, 16, v{t1}")
                a(f"v_mul_u32_u24 v{t2}, 30, v{t1}")
                a(f"v_sub_u32 v{t0}, v{t0}, v{t2}")
                a(f"v_mul_u32_u24 v{t2}, 205, v{t0}")
                a(f"v_lshrrev_b32 v{t2}, 11, v{t2}")
                a(f"v_mul_u32_u24 v{t3}, 10, v{t2}")
                a(f"v_sub_u32 v{t0}, v{t0}, v{t3}")
                a(f"v_mul_u32_u24 v{t2}, 1280, v{t2}")
                a(f"v_lshl_add_u32 v{t0}, v{t0}, 4, v{t2}")
            else:
                a(f"v_mul_u32_u24 v{t1}, 2731, v{t0}")
                a(f"v_lshrrev_b32 v{t1}, 16, v{t1}")
                a(f"v_mul_u32_u24 v{t2}, 24, v{t1}")
                a(f"v_sub_u32 v{t0}, v{t0}, v{t2}")
                a(f"v_bfe_u32 v{t2}, v{t1}, 1, 2")
                a(f"v_lshlrev_b32 v{t2}, 1, v{t2}")
                a(f"v_xor_b32 v{t0}, v{t0}, v{t2}")
                a(f"v_lshlrev_b32 v{t0}, 4, v{t0}")
            swap23(a, t2, t1, t3)
            a(f"v_mul_u32_u24 v{t2}, {WG_P}, v{t2}")
            a(f"v_add3_u32 v{t4}, v{t2}, v{t0}, s42")
        if 8 * i + 7 >= NWI:
            a(f"s_sub_u32 s47, s46, {NWI}")
            a(f"s_lshl_b32 s47, s47, 3")
            a(f"v_lshrrev_b32 v{t0}, 3, v{v_lane}")
            a(f"v_add_u32 v{t0}, s47, v{t0}")
            a(f"v_and_b32 v{t1}, 7, v{v_lane}")
            a(f"v_and_b32 v{t2}, 7, v{t0}")
            a(f"v_xor_b32 v{t1}, v{t1}, v{t2}")
            a(f"s_sub_u32 s47, s40, {HOFF}")
            a(f"v_add_u32 v{t0}, s47, v{t0}")
            a(f"v_mul_lo_u32 v{t0}, v{t0}, s41")
            a(f"v_lshl_add_u32 v{t5}, v{t1}, 4, v{t0}")
        if 8 * i + 7 < NWI:
            a(f"v_mov_b32 v{v_doff+i}, v{t4}")
        elif 8 * i >= NWI:
            if 8 * i + 7 >= NWI + NAI:
                a(f"s_cmp_lt_u32 s46, {NWI+NAI}")
                a(f"s_cselect_b64 vcc, -1, 0")
                a(f"v_mov_b32 v{t0}, {BIG}")
                a(f"v_cndmask_b32 v{v_doff+i}, v{t0}, v{t5}, vcc")
            else:
                a(f"v_mov_b32 v{v_doff+i}, v{t5}")
        else:
            a(f"s_cmp_lt_u32 s46, {NWI}")
            a(f"s_cselect_b64 vcc, -1, 0")
            a(f"v_cndmask_b32 v{v_doff+i}, v{t5}, v{t4}, vcc")
    a(f"v_add_u32 v{v_doff+4}, {NAI*8*1280}, v{v_doff+2}")
    a(f"v_add_u32 v{t0}, {NAI*8*1280}, v{v_doff+1}")
    a(f"s_add_u32 s46, s39, 8")
    a(f"s_cmp_lt_u32 s46, {NWI}")
    a(f"s_cselect_b64 vcc, -1, 0")
    a(f"v_cndmask_b32 v{v_doff+3}, v{t0}, v{v_doff+1}, vcc")
    a.capture()
    a(f"v_and_b32 v{t0}, 7, v{v_m}")
    for kh in range(2):
        a(f"v_add_u32 v{t1}, {4*kh}, v{v_g}")
        a(f"v_xor_b32 v{t1}, v{t1}, v{t0}")
        a(f"v_lshlrev_b32 v{t1}, 4, v{t1}")
        a(f"v_lshl_add_u32 v{t2+kh}, v{v_m}, 7, v{t1}")
    a("s_lshl_b32 s46, s43, 2")
    for j in range(4):
        if attn:
            a(f"s_add_u32 s47, s44, {j}")
            a("s_and_b32 s47, s47, 3")
            a("s_add_u32 s47, s47, s46")
        else:
            a(f"s_add_u32 s47, s46, {j}")
        a(f"s_lshl_b32 s47, s47, 11")
        a(f"s_add_u32 s47, s47, {ARING + HOFF*128}")
        for kh in range(2):
            a(f"v_add_u32 v{v_aa+2*j+kh}, s47, v{t2+kh}")
    if attn:
        for kh in range(2):
            a(f"v_add_u32 v{v_ha+kh}, {ARING}, v{t2+kh}") if ARING else a(f"v_mov_b32 v{v_ha+kh}, v{t2+kh}")
    else:
        a("s_add_u32 s47, s46, s44")
        a("s_lshl_b32 s47, s47, 11")
        for kh in range(2):
            a(f"v_add_u32 v{v_ha+kh}, s47, v{t2+kh}")
    a(f"v_lshrrev_b32 v{t0}, 1, v{v_g}")
    a(f"v_lshlrev_b32 v{t0}, 4, v{t0}")
    a(f"v_and_b32 v{t1}, 1, v{v_g}")
    a(f"v_lshl_add_u32 v{t0}, v{t1}, 2, v{t0}")
    a(f"v_bfe_u32 v{t1}, v{v_lane}, 2, 2")
    a(f"v_add_u32 v{t0}, v{t0}, v{t1}")
    a(f"v_bfe_u32 v{t1}, v{t0}, 1, 2")
    a(f"v_mul_u32_u24 v{t0}, {WP}, v{t0}")
    a(f"v_and_b32 v{t2}, 3, v{v_lane}")
    a(f"v_lshl_add_u32 v{t0}, v{t2}, 3, v{t0}")
    a(f"v_add_u32 v{t0}, {WRING}, v{t0}")
    for j in range(NJW):
        if attn:
            a(f"s_lshl_b32 s47, s43, 1")
            a(f"s_add_u32 s47, s47, {j}")
            a("s_and_b32 s47, s47, 3")
            a("s_lshl_b32 s46, s44, 2")
            a(f"s_add_u32 s{56+j}, s47, s46")
            a(f"s_lshl_b32 s47, s{56+j}, 5")
            a(f"v_add_u32 v{v_wa+j}, s47, v{t0}")
        else:
            a("s_mul_i32 s46, s44, 3")
            a(f"s_add_u32 s{56+j}, s46, {j}")
            a(f"v_xor_b32 v{t2}, s{56+j}, v{t1}")
            a(f"v_lshl_add_u32 v{v_wa+j}, v{t2}, 5, v{t0}")
    for j in range(NJW):
        a(f"v_add_u32 v{v_wa+4+j}, {SLO*WSTG}, v{v_wa+j}")
    for i in range(16 * NJW):
        a(f"v_mov_b32 v{acc+i}, 0")
    for i in range(4 * (2 if attn else 3)):
        a(f"v_mov_b32 v{acch+i}, 0")
    for i in range(16):
        a(f"v_mov_b32 v{v_st+i}, 0")
    for i in range(4):
        a(f"v_mov_b32 v{v_ones+i}, 0x3f803f80")
    a(f"v_cmp_eq_u32 s[54:55], 0, v{v_m}")
    a("s_mov_b32 s60, 0x3f803f80")
    deferred = a.release()
    a("s_waitcnt lgkmcnt(0)")
    a.stamp(1)
    srd(a, 8, 4, 5, S * D * 2)
    if attn:
        srd(a, 12, 6, 7, D * 3840)
    else:
        srd(a, 12, 28, 29, D * 3072)
        srd(a, 24, 30, 31, F * 2)
    srd(a, 20, 34, 35, S * OHP)
    a(f"s_add_u32 s46, s39, 8")
    a(f"s_cmp_lt_u32 s46, {NWI}")
    a("s_cselect_b32 s53, 1, 0")
    for q in range(4):
        a(f"s_cselect_b32 s{16+q}, s{12+q}, s{8+q}")
    if not attn:
        a(f"s_add_u32 s46, s39, 16")
        a(f"s_cmp_lt_u32 s46, {NWI+NAI}")
        a("s_cselect_b32 s52, 1, 0")

    def issue(ksw, ah):
        wso = ksw * 32 * WG_P if ksw is not None else None
        wl = WRING + (ksw % NW) * WSTG if ksw is not None else None
        if ah is not None:
            ch, par = ah >> 1, ah & 1
            aso = ch * 128
            al = ARING + (ch % NA) * ASTG + par * NAI * 1024 - NWI * 1024
        tag = ("D", ksw, ah)
        if ksw is not None:
            a(f"s_mov_b32 s46, {wso}")
            a(f"s_add_u32 m0, s45, {wl}")
            a("s_nop 0")
            a.vmem(f"buffer_load_dwordx4 v{v_doff}, s[12:15], s46 offen lds", tag)
        OOR = 0x30000
        if ksw is not None or ah is not None:
            a("s_cmp_lg_u32 s53, 0")
            a(f"s_mov_b32 s46, {aso if ah is not None else BIG}")
            a(f"s_cmov_b32 s46, {wso if ksw is not None else BIG}")
            a(f"s_mov_b32 s47, {(al + 8192) & 0xffffffff if ah is not None else OOR}")
            a(f"s_cmov_b32 s47, {wl + 8192 if ksw is not None else OOR}")
            a("s_add_u32 m0, s45, s47")
            a("s_nop 0")
            a.vmem(f"buffer_load_dwordx4 v{v_doff+1+(2*(ah&1) if ah is not None else 0)}, s[16:19], s46 offen lds", tag)
        if ah is not None:
            a(f"s_mov_b32 s46, {aso}")
            if attn:
                a(f"s_add_u32 m0, s45, {al + 16384}")
            else:
                a("s_cmp_lg_u32 s52, 0")
                a(f"s_mov_b32 s47, {OOR}")
                a(f"s_cmov_b32 s47, {al + 16384}")
                a("s_add_u32 m0, s45, s47")
            a("s_nop 0")
            a.vmem(f"buffer_load_dwordx4 v{v_doff+2+2*(ah&1)}, s[8:11], s46 offen lds", tag)
        return tag

    def reads(ks):
        b = ks & 1; kh = ks & 1
        st = ks % NW
        wreg, woff = (v_wa, st * WSTG) if st < SLO else (v_wa + 4, (st - SLO) * WSTG)
        aoff = ((ks >> 1) % NA) * ASTG
        ins = []
        for j in range(NJW):
            for q in range(2):
                ins.append(f"ds_read_b64_tr_b16 {vr(Wf+4*NJW*b+4*j+2*q,2)}, v{wreg+j} offset:{woff+q*8*WP}")
        for j in range(4):
            ins.append(f"ds_read_b128 {vr(Af+4*NAF*b+4*j,4)}, v{v_aa+2*j+kh} offset:{aoff}")
        ins.append(f"ds_read_b128 {vr(Af+4*NAF*b+16,4)}, v{v_ha+kh} offset:{aoff}")
        return ins
    NRD = 2 * NJW + NAF
    def compute(ks):
        b = ks & 1
        af = Af + 4 * NAF * b; wf = Wf + 4 * NJW * b
        valu = []
        pre = []
        if attn:
            for d in range(4):
                pre.append(f"v_cndmask_b32 v{af+16+d}, v{af+16+d}, v{v_ones}, s[54:55]")
        mf = []
        for jw in range(NJW):
            for ja in range(4):
                c = acc + 4 * (jw * 4 + ja)
                mf.append(f"v_mfma_f32_16x16x32_bf16 {vr(c,4)}, {vr(wf+4*jw,4)}, {vr(af+4*ja,4)}, {vr(c,4)}")
        SV = os.environ.get("STATS_VALU")
        if SV == "1":
            for d in range(4):
                valu.append(f"v_lshlrev_b32 v{t5}, 16, v{af+d}")
                valu.append(f"v_and_b32 v{t6}, 0xffff0000, v{af+d}")
                valu.append(f"v_add_f32 v{v_st}, v{v_st}, v{t5}")
                valu.append(f"v_add_f32 v{v_st+1}, v{v_st+1}, v{t6}")
                valu.append(f"v_fmac_f32 v{v_st+2}, v{t5}, v{t5}")
                valu.append(f"v_fmac_f32 v{v_st+3}, v{t6}, v{t6}")
        elif SV == "2":
            pass
        else:
            sf = af if attn else af + 16
            mf.append(f"v_mfma_f32_16x16x32_bf16 {vr(v_st,4)}, {vr(v_ones,4)}, {vr(sf,4)}, {vr(v_st,4)}")
            mf.append(f"v_mfma_f32_16x16x32_bf16 {vr(v_st+4,4)}, {vr(sf,4)}, {vr(sf,4)}, {vr(v_st+4,4)}")
        mh = []
        for jw in range(2 if attn else 3):
            c = acch + 4 * jw
            src = vr(af + 16, 4) if attn else vr(v_ones, 4)
            mh.append(f"v_mfma_f32_16x16x32_bf16 {vr(c,4)}, {vr(wf+4*jw,4)}, {src}, {vr(c,4)}")
        return mf, mh, pre + valu

    tagW = {}; tagA = {}
    def touch_prefetch():
        if os.environ.get("NOPF"): return
        nl = 6 if attn else 3
        a(f"v_mul_u32_u24 v{t0}, {(65536 + nl - 1)//nl}, v{v_lane}")
        a(f"v_lshrrev_b32 v{t0}, 16, v{t0}")
        a(f"v_mul_u32_u24 v{t1}, {nl}, v{t0}")
        a(f"v_sub_u32 v{t1}, v{v_lane}, v{t1}")
        a("s_mul_i32 s46, s37, 40")
        a("s_mul_i32 s47, s39, 5")
        a("s_add_u32 s46, s46, s47")
        a(f"v_add_u32 v{t0}, s46, v{t0}")
        a(f"v_mul_u32_u24 v{t0}, {WG_P}, v{t0}")
        if attn:
            a(f"v_lshrrev_b32 v{t2}, 1, v{t1}")
            a(f"v_and_b32 v{t1}, 1, v{t1}")
            a(f"v_mul_u32_u24 v{t2}, 1280, v{t2}")
            a(f"v_mul_u32_u24 v{t1}, 156, v{t1}")
            a(f"v_add3_u32 v{t0}, v{t0}, v{t1}, v{t2}")
        else:
            a(f"v_lshl_add_u32 v{t0}, v{t1}, 7, v{t0}")
        a(f"v_add_u32 v{t0}, s42, v{t0}")
        a(f"v_mov_b32 v{t3}, {BIG}")
        a(f"v_cmp_gt_u32 vcc, {5*nl}, v{v_lane}")
        a("s_nop 1")
        a(f"v_cndmask_b32 v{t0}, v{t3}, v{t0}, vcc")
        a.vmem(f"buffer_load_dword v{t7}, v{t0}, s[12:15], 0 offen", "pf")
        a("s_lshl_b32 s46, s38, 1")
        a("s_add_u32 s46, s46, s36")
        a("s_mul_i32 s46, s46, 80")
        a("s_mul_i32 s47, s39, 10")
        a("s_add_u32 s46, s46, s47")
        a("s_mul_i32 s47, s40, 10")
        a("s_add_u32 s46, s46, s47")
        a(f"v_add_u32 v{t0}, s46, v{v_lane}")
        a(f"v_lshlrev_b32 v{t0}, 7, v{t0}")
        a(f"v_cmp_gt_u32 vcc, 10, v{v_lane}")
        a("s_nop 1")
        a(f"v_cndmask_b32 v{t0}, v{t3}, v{t0}, vcc")
        a.vmem(f"buffer_load_dword v{t7}, v{t0}, s[8:11], 0 offen", "pf")
    def k2_prefetch():
        a(f"v_mov_b32 v{t3}, {BIG}")
        srd(a, 68, 74, 75, D * 1280)
        srd(a, 76, 76, 77, F * 1280)
        a("s_mul_i32 s46, s2, 25")
        a("s_mul_i32 s47, s2, 60")
        a(f"v_add_u32 v{t0}, s46, v{v_lane}")
        a(f"v_lshlrev_b32 v{t0}, 7, v{t0}")
        a(f"v_cmp_gt_u32 vcc, 25, v{v_lane}")
        a("s_cmp_eq_u32 s39, 0")
        a("s_cselect_b64 s[48:49], vcc, 0")
        a(f"v_add_u32 v{t1}, s47, v{v_lane}")
        a(f"v_lshlrev_b32 v{t1}, 7, v{t1}")
        a(f"v_cmp_gt_u32 vcc, 60, v{v_lane}")
        a("s_cmp_eq_u32 s39, 1")
        a("s_cselect_b64 s[50:51], vcc, 0")
        a(f"v_cndmask_b32 v{t0}, v{t3}, v{t0}, s[48:49]")
        a(f"v_cndmask_b32 v{t1}, v{t3}, v{t1}, s[50:51]")
        a.vmem(f"buffer_load_dword v{t7}, v{t0}, s[68:71], 0 offen", "pf")
        a.vmem(f"buffer_load_dword v{t7}, v{t1}, s[76:79], 0 offen", "pf")
    def k2_l2_prefetch():
        a(f"v_mul_u32_u24 v{t0}, 205, v{v_lane}")
        a(f"v_lshrrev_b32 v{t0}, 10, v{t0}")
        a(f"v_mul_u32_u24 v{t1}, 5, v{t0}")
        a(f"v_sub_u32 v{t1}, v{v_lane}, v{t1}")
        a("s_lshr_b32 s46, s38, 2")
        a("s_mul_i32 s47, s46, 3")
        a(f"v_add_u32 v{t2}, s47, v{t1}")
        a("s_lshl_b32 s47, s46, 1")
        a("s_add_u32 s47, s47, 3")
        a(f"v_add_u32 v{t3}, s47, v{t1}")
        a(f"v_cmp_gt_u32 vcc, 3, v{t1}")
        a("s_mul_i32 s46, s39, 9")
        a(f"v_add_u32 v{t0}, s46, v{t0}")
        a(f"v_cndmask_b32 v{t2}, v{t3}, v{t2}, vcc")
        a(f"v_cmp_gt_u32 s[48:49], 45, v{v_lane}")
        a(f"v_cmp_gt_u32 vcc, 68, v{t0}")
        a("s_and_b64 s[48:49], s[48:49], vcc")
        a("s_lshr_b32 s46, s2, 3")
        a("s_mul_i32 s46, s46, 68")
        a(f"v_add_u32 v{t0}, s46, v{t0}")
        a(f"v_mul_u32_u24 v{t0}, 1280, v{t0}")
        a(f"v_lshl_add_u32 v{t0}, v{t2}, 7, v{t0}")
        a(f"v_mov_b32 v{t3}, {BIG}")
        a(f"v_cndmask_b32 v{t0}, v{t3}, v{t0}, s[48:49]")
        a(f"v_subrev_u32 v{t1}, {640*1280}, v{t0}")
        a.vmem(f"buffer_load_dword v{t7}, v{t0}, s[68:71], 0 offen", "pf")
        a.vmem(f"buffer_load_dword v{t7}, v{t1}, s[76:79], 0 offen", "pf")
    nxt = {"w": 0, "a": 0}
    def issue_next(limW, limA):
        ksw = nxt["w"] if nxt["w"] < min(limW, NKS) else None
        ah = nxt["a"] if nxt["a"] < min(limA, NKS) else None
        if ksw is None and ah is None: return
        tg = issue(ksw, ah)
        if ksw is not None: tagW[ksw] = tg; nxt["w"] += 1
        if ah is not None: tagA[ah] = tg; nxt["a"] += 1
    PRE = int(os.environ.get("K1_PRE", 2))
    RAMP = int(os.environ.get("K1_RAMP", 2))
    if os.environ.get("PFORDER") == "0": touch_prefetch()
    for i in range(PRE):
        issue_next(NW - 1, AD)
    if os.environ.get("PFORDER") == "1": touch_prefetch()
    for ins in deferred: a(ins)
    if os.environ.get("FUSED"):
        a("s_and_b32 s46, s2, 7")
        a("s_lshl_b32 s46, s46, 4")
        a("s_lshr_b32 s47, s2, 4")
        a("s_add_u32 s46, s46, s47")
        a(f"s_add_u32 s46, s46, {0 if attn else 128}")
        a("s_lshl_b32 s46, s46, 7")
        a(f"s_add_u32 s46, s46, {0x1000000}")
        a(f"v_mov_b32 v{t0}, s46")
        a(f"v_mov_b32 v{t1}, {BIG}")
        a(f"v_cmp_eq_u32 vcc, 0, v0")
        a(f"v_mov_b32 v{t2}, 0")
        a(f"v_mov_b32 v{t3}, 0")
        a(f"v_cndmask_b32 v{t0}, v{t1}, v{t0}, vcc")
        srd(a, 92, 34, 35, 0x2000000)
        a.vmem(f"buffer_store_dwordx2 v[{t2}:{t3}], v{t0}, s[92:95], 0 offen sc1", "mbz")
    PF_AT = int(os.environ.get('PF_AT', -1))
    if PF_AT < 0 and not os.environ.get('PFORDER'): touch_prefetch()
    if not attn:
        for j in range(NJW):
            a(f"s_lshl_b32 s46, s{56+j}, 5")
            a("s_add_u32 s46, s46, s42")
            a(f"v_lshl_add_u32 v{t0}, v{v_g}, 3, s46")
            a.vmem(f"buffer_load_dwordx2 {vr(v_b1+2*j,2)}, v{t0}, s[24:27], 0 offen", "b1")
    a.vm_wait([tagW[0], tagA[0], tagA[1]])
    a("s_barrier")
    a.stamp(2)
    for ins in reads(0): a(ins)
    for ks in range(NKS):
        a.comment(f"{P} k-step {ks}")
        side = []
        if ks + 1 < NKS:
            need = [tagW[ks + 1]]
            if (ks + 1) % 2 == 0:
                need += [tagA[ks + 1], tagA[ks + 2]]
            a.vm_wait(need, "lgkmcnt(0)")
            a("s_barrier")
            side += reads(ks + 1)
            a.capture()
            for _ in range(RAMP):
                issue_next(ks + NW, ks + AD + 1)
            if ks == 5 and os.environ.get("FUSED"):
                assert "mbz" not in a.vm
                a("s_load_dwordx2 s[92:93], s[0:1], 72")
            if ks == 6 and os.environ.get("FUSED"):
                srd(a, 92, 92, 93, 256)
                a(f"v_mov_b32 v{t5}, {BIG}")
                a(f"v_cmp_eq_u32 vcc, 0, v0")
                a(f"v_mov_b32 v{t6}, 1")
                a("s_nop 0")
                a(f"v_cndmask_b32 v{t5}, v{t5}, 0, vcc")
                a.vmem(f"buffer_atomic_add v{t6}, v{t5}, s[92:95], 0 offen", "mba")
            if ks == PF_AT: touch_prefetch()
            if ks == int(os.environ.get("K2PF_AT", 7)) and not os.environ.get("NOPF"):
                k2_prefetch()
            if ks == int(os.environ.get("L2PF_AT", 99)):
                k2_l2_prefetch()
            side += a.release()
        else:
            a("s_waitcnt lgkmcnt(0)")
        mf, mh, valu = compute(ks)
        if os.environ.get("NOVALU"): valu = []
        if os.environ.get("NOMF"): mf = mf[:1]; mh = []
        side += valu
        interleave(a, mf, side)
        a("s_nop 1")
        for m in mh: a(m)
        if attn:
            L = a.newlabel("HS")
            af = Af + 4 * NAF * (ks & 1)
            a("s_cmp_lg_u32 s39, 7")
            a(f"s_cbranch_scc1 {L}")
            a(f"v_mfma_f32_16x16x32_bf16 {vr(v_st+8,4)}, {vr(v_ones,4)}, {vr(af+16,4)}, {vr(v_st+8,4)}")
            a(f"v_mfma_f32_16x16x32_bf16 {vr(v_st+12,4)}, {vr(af+16,4)}, {vr(af+16,4)}, {vr(v_st+12,4)}")
            a.label(L)
    a.stamp(3)
    QKV = 2560; STATS = 0; CS = 1280; EDUM = 2304 - QKV
    import struct
    f2u = lambda x: struct.unpack("<I", struct.pack("<f", x))[0]
    a("s_nop 7")
    a(f"v_and_b32 v{t0}, 3, v{v_m}")
    a(f"v_cmp_eq_u32 s[66:67], 1, v{t0}")
    a(f"v_cmp_eq_u32 s[68:69], 2, v{t0}")
    a(f"v_cmp_eq_u32 s[70:71], 3, v{t0}")
    a(f"v_lshrrev_b32 v{t1}, 2, v{v_m}")
    a(f"v_cmp_eq_u32 s[72:73], v{t1}, v{v_g}")
    a(f"s_mov_b32 s46, {0x3acccccd}")
    a(f"s_mov_b32 s47, {0x3727c5ac}")
    def stats_math(b):
        s0, s1 = v_st + b, v_st + b + 1
        a(f"v_cndmask_b32 v{s1}, v{v_st+b+4}, v{v_st+b+5}, s[66:67]")
        a(f"v_cndmask_b32 v{s1}, v{s1}, v{v_st+b+6}, s[68:69]")
        a(f"v_cndmask_b32 v{s1}, v{s1}, v{v_st+b+7}, s[70:71]")
        a(f"v_mul_f32 v{s0}, s46, v{s0}")
        a(f"v_mul_f32 v{s1}, s46, v{s1}")
        a(f"v_fma_f32 v{s1}, -v{s0}, v{s0}, v{s1}")
        a(f"v_max_f32 v{s1}, 0, v{s1}")
        bf16r(a, t0, s0)
        bf16r(a, t1, s1)
        a(f"v_add_f32 v{t1}, s47, v{t1}")
        bf16r(a, t1, t1)
        a(f"v_sqrt_f32 v{t1}, v{t1}")
        a("s_nop 0")
        bf16r(a, t1, t1)
        a(f"v_rcp_f32 v{t1}, v{t1}")
        a("s_nop 0")
        if attn:
            a(f"v_mov_b32 v{s0}, v{t1}")
            a(f"v_sub_f32 v{s1}, 0, v{t0}")
        else:
            a(f"v_sub_f32 v{t2}, v{s0}, v{t0}")
            a(f"v_mul_f32 v{t2}, v{t2}, v{t1}")
            a(f"v_mul_f32 v{t3}, v{s1}, v{t1}")
            a(f"v_mul_f32 v{t3}, v{t3}, v{t1}")
            bf16r(a, t2, t2)
            bf16r(a, t3, t3)
            a(f"v_add_f32 v{t3}, s47, v{t3}")
            bf16r(a, t3, t3)
            a(f"v_sqrt_f32 v{t3}, v{t3}")
            a("s_nop 0")
            bf16r(a, t3, t3)
            a(f"v_rcp_f32 v{t3}, v{t3}")
            a(f"v_fma_f32 v{t2}, v{t0}, v{t1}, v{t2}")
            a(f"v_mul_f32 v{s0}, v{t1}, v{t3}")
            a(f"v_mul_f32 v{s1}, -v{t2}, v{t3}")
    stats_math(0)
    if attn:
        L = a.newlabel("HM")
        a("s_cmp_lg_u32 s39, 7")
        a(f"s_cbranch_scc1 {L}")
        stats_math(8)
        a.label(L)
    a("s_lshl_b32 s46, s43, 2")
    a("s_add_u32 s46, s46, s44")
    a("s_lshl_b32 s46, s46, 7")
    a(f"s_add_u32 s46, s46, {STATS + HOFF*8}")
    a(f"v_lshl_add_u32 v{t0}, v{v_m}, 3, s46")
    a(f"v_lshlrev_b32 v{t1}, 3, v{v_m}")
    a("s_barrier")
    a("s_mov_b64 s[48:49], exec")
    a("s_mov_b64 exec, s[72:73]")
    a(f"ds_write_b64 v{t0}, {vr(v_st,2)}")
    if attn:
        L = a.newlabel("HW")
        a("s_cmp_lg_u32 s39, 7")
        a(f"s_cbranch_scc1 {L}")
        a(f"ds_write_b64 v{t1}, {vr(v_st+8,2)} offset:{STATS}")
        a.label(L)
        a("s_mov_b64 exec, s[54:55]")
        for j in range(2):
            a(f"s_lshl_b32 s46, s{56+j}, 6")
            a(f"v_lshl_add_u32 v{t2}, v{v_g}, 4, s46")
            a(f"ds_write_b128 v{t2}, {vr(acch+4*j,4)} offset:{CS}")
    a("s_mov_b64 exec, s[48:49]")
    sreg = Af
    csr = Af + 12
    rowo = Wf
    for j in range(4):
        if attn:
            a(f"s_add_u32 s47, s44, {j}")
            a("s_and_b32 s47, s47, 3")
        else:
            a(f"s_mov_b32 s47, {j}")
        a("s_lshl_b32 s46, s43, 2")
        a(f"s_add_u32 s{62+j}, s47, s46")
    if attn:
        a(f"v_mul_u32_u24 v{t2}, {QP}, v{v_m}")
        a(f"v_lshl_add_u32 v{rowo+4}, v{v_g}, 3, v{t2}")
        for j in range(4):
            a(f"s_mul_i32 s46, s{62+j}, {16*QP}")
            a(f"s_add_u32 s46, s46, {16*QP}")
            a(f"v_add_u32 v{rowo+j}, s46, v{rowo+4}")
    else:
        a(f"v_mul_u32_u24 v{t2}, 400, v{v_m}")
        a(f"v_lshl_add_u32 v{t2}, v{v_g}, 3, v{t2}")
        a("s_mul_i32 s49, s44, 96")
        a(f"v_add_u32 v{t2}, s49, v{t2}")
        for j in range(4):
            a(f"s_mul_i32 s48, s{62+j}, {16*400}")
            a(f"v_add_u32 v{rowo+j}, s48, v{t2}")
    if attn:
        attention_mfma(a, R, t, v_lane, 0)
    a("s_waitcnt lgkmcnt(0)")
    a("s_barrier")
    for j in range(4):
        a(f"s_lshl_b32 s47, s{62+j}, 7")
        a(f"v_add_u32 v{t0}, s47, v{t1}")
        a(f"ds_read_b64 {vr(sreg+2*j,2)}, v{t0} offset:{STATS + HOFF*8}")
    if attn:
        a(f"ds_read_b64 {vr(sreg+8,2)}, v{t1} offset:{STATS}")
        for j in range(4):
            a(f"s_lshl_b32 s46, s{56+j}, 6")
            a(f"v_lshl_add_u32 v{t0}, v{v_g}, 4, s46")
            a(f"ds_read_b128 {vr(csr+4*j,4)}, v{t0} offset:{CS}")
        a("s_waitcnt lgkmcnt(0)")
        for jw in range(4):
            a(f"s_lshl_b32 s46, s{56+jw}, 5")
            a(f"s_cmp_eq_u32 s{56+jw}, 15")
            a("s_cmov_b32 s46, 0x40000000")
            for ja in range(5):
                if ja == 4 and jw >= 2: continue
                c = acc + 4 * (jw * 4 + ja) if ja < 4 else acch + 4 * jw
                for r in range(4):
                    a(f"v_fma_f32 v{c+r}, v{csr+4*jw+r}, v{sreg+2*ja+1}, v{c+r}")
                a(f"v_add_u32 v{t0+ja}, s46, v{rowo+ja}")
                for r in range(4):
                    a(f"v_mul_f32 v{c+r}, v{c+r}, v{sreg+2*ja}")
                a(f"v_cvt_pk_bf16_f32 v{c}, v{c}, v{c+1}")
                a(f"v_cvt_pk_bf16_f32 v{c+1}, v{c+2}, v{c+3}")
                a(f"ds_write_b64 v{t0+ja}, {vr(c,2)} offset:{QKV}")
        a("s_waitcnt lgkmcnt(0)")
        a("s_barrier")
        a.stamp(4)
        attention_mfma(a, R, t, v_lane, 1)
    else:
        a.vm_wait("b1")
        C1 = -2.0 * 0.7978845608028654 * 1.4426950408889634
        a(f"s_mov_b32 s46, {f2u(C1)}")
        a(f"s_mov_b32 s47, {f2u(C1*0.044715)}")
        a(f"v_mov_b32 v{t7}, s46")
        for jw in range(3):
            bb = csr + 4 * jw
            for h in range(2):
                a(f"v_lshlrev_b32 v{bb+2*h}, 16, v{v_b1+2*jw+h}")
                a(f"v_and_b32 v{bb+2*h+1}, 0xffff0000, v{v_b1+2*jw+h}")
            a(f"s_lshl_b32 s48, s{56+jw}, 5")
            a("s_add_u32 s48, s48, s42")
            a(f"s_add_u32 s{66+jw}, s48, 1280")
        a("s_waitcnt lgkmcnt(0)")
        a.stamp(4)
        u = [t0, t1, t2, t3]
        pl = v_aa; pg = v_aa + 2; sd = Wf + 8
        a(f"s_movk_i32 s51, {OHP}")
        for i in range(2):
            a(f"v_add_u32 v{t4}, {512*i}, v0")
            a(f"v_mul_u32_u24 v{t5}, 2731, v{t4}")
            a(f"v_lshrrev_b32 v{t5}, 16, v{t5}")
            a(f"v_mul_u32_u24 v{t6}, 24, v{t5}")
            a(f"v_sub_u32 v{t6}, v{t4}, v{t6}")
            a(f"v_lshrrev_b32 v{pl+i}, 4, v{t5}")
            a(f"v_and_b32 v{t5}, 15, v{t5}")
            a(f"v_lshl_add_u32 v{t5}, v{pl+i}, 6, v{t5}")
            a(f"v_mul_u32_u24 v{pl+i}, 400, v{t5}")
            a(f"v_lshl_add_u32 v{pl+i}, v{t6}, 4, v{pl+i}")
            a(f"v_add_u32 v{t5}, s40, v{t5}")
            a(f"v_mul_lo_u32 v{t5}, v{t5}, s51")
            a(f"v_lshl_add_u32 v{pg+i}, v{t6}, 4, v{t5}")
        a(f"v_mov_b32 v{t5}, {BIG}")
        a("v_cmp_gt_u32 vcc, 0x100, v0")
        a("s_add_u32 s66, s42, 1280")
        a("s_nop 0")
        a(f"v_cndmask_b32 v{pg+1}, v{t5}, v{pg+1}, vcc")
        def pstore(ja):
            b = ja & 1
            a("s_waitcnt lgkmcnt(0)")
            a(f"s_add_u32 s67, s66, {ja*16*OHP}")
            for i in range(2):
                a(f"buffer_store_dwordx4 {vr(sd+8*b+4*i,4)}, v{pg+i}, s[20:23], s67 offen {os.environ.get('STFLAG','')}")
        for ja in range(4):
            for jw in range(3):
                bb = csr + 4 * jw
                c = acc + 4 * (jw * 4 + ja)
                for r in range(4):
                    a(f"v_fma_f32 v{u[r]}, v{acch+4*jw+r}, v{sreg+2*ja+1}, v{bb+r}")
                for r in range(4):
                    a(f"v_fma_f32 v{c+r}, v{c+r}, v{sreg+2*ja}, v{u[r]}")
                for r in range(4):
                    a(f"v_mul_f32 v{u[r]}, v{c+r}, v{c+r}")
                for r in range(4):
                    a(f"v_fma_f32 v{u[r]}, v{u[r]}, s47, v{t7}")
                for r in range(4):
                    a(f"v_mul_f32 v{u[r]}, v{u[r]}, v{c+r}")
                for r in range(4):
                    a(f"v_exp_f32 v{u[r]}, v{u[r]}")
                for r in range(4):
                    a(f"v_add_f32 v{u[r]}, 1.0, v{u[r]}")
                for r in range(4):
                    a(f"v_rcp_f32 v{u[r]}, v{u[r]}")
                for r in range(4):
                    a(f"v_mul_f32 v{c+r}, v{c+r}, v{u[r]}")
                a(f"v_cvt_pk_bf16_f32 v{c}, v{c}, v{c+1}")
                a(f"v_cvt_pk_bf16_f32 v{c+1}, v{c+2}, v{c+3}")
                if jw == 0 and ja > 0:
                    pstore(ja - 1)
                a(f"ds_write_b64 v{rowo+ja}, {vr(c,2)} offset:{4096 + 32*jw}")
            a("s_waitcnt lgkmcnt(0)")
            a("s_barrier")
            for i in range(2):
                a(f"ds_read_b128 {vr(sd+8*(ja&1)+4*i,4)}, v{pl+i} offset:{4096 + ja*16*400}")
        pstore(3)
    if os.environ.get("FUSED"):
        a.stamp(1)
        a.trace_mark(0)
    elif not os.environ.get("STAMPA"):
        a.stamp(5)
    if os.environ.get("STAMP") and not os.environ.get("FUSED"):
        a("s_waitcnt vmcnt(0)")
    if not os.environ.get("STAMPA") and not os.environ.get("FUSED"):
        a.stamp(6)
    if not os.environ.get("FUSED"): a.stamp_dump(8 if os.environ.get("STAMPA") else 7, t0, wg=(0 if attn else 8)) if (attn == (os.environ.get("STAMP") == "1")) else None
    if os.environ.get("FUSED"):
        from gen_k2f import k2_body
        from gen_k2f import notify, notify_fire
        a("s_barrier")
        L = a.newlabel("P2"); L7 = a.newlabel("W7"); L7b = a.newlabel("W7B")
        a("s_cmp_lt_u32 s39, 4")
        a(f"s_cbranch_scc1 {L}")
        a("s_cmp_eq_u32 s39, 7")
        a(f"s_cbranch_scc1 {L7}")
        a("s_waitcnt vmcnt(0)")
        a("s_barrier")
        a("s_branch K1_END")
        a.label(L7)
        notify(a, attn, t)
        a("s_waitcnt vmcnt(0)")
        a("s_barrier")
        notify_fire(a, attn, t)
        a("s_branch K1_END")
        a.label(L)
        nv2, l2 = k2_body(a, 64 if attn else 96)
        a.stamp(7)
        if os.environ.get("STAMP") and (attn == (os.environ.get("STAMP") == "1")):
            a.stamp_dump(8, 4, wg=(0 if attn else 8), off=128)
        a.trace_end(24)
        return max(R.cur, nv2), max(LDS_TOTAL, l2)
    a.trace_end(24)
    return R.cur, LDS_TOTAL

def attention(a, R, t, v_lane):
    import struct
    f2u = lambda x: struct.unpack("<I", struct.pack("<f", x))[0]
    t0, t1, t2, t3, t4, t5, t6, t7 = t
    base = 24
    q = 24
    kb = 34
    lg = 114
    o = 124
    pk = 144
    a(f"v_lshrrev_b32 v{t0}, 2, v0")
    a(f"v_and_b32 v{t1}, 3, v0")
    a(f"v_add_u32 v{t2}, 2, v{t0}")
    a(f"v_mul_u32_u24 v{t2}, 480, v{t2}")
    a(f"v_mul_u32_u24 v{t3}, 40, v{t1}")
    a(f"v_add_u32 v{t2}, v{t2}, v{t3}")
    a(f"v_add_u32 v{t2}, 2560, v{t2}")
    for j in range(5):
        a(f"ds_read_b64 {vr(q+2*j,2)}, v{t2} offset:{14*480 + 8*j}")
    for w in range(8):
        for j in range(5):
            a(f"ds_read_b64 {vr(kb+10*w+2*j,2)}, v{t2} offset:{(14-2*w)*480 + 160 + 8*j}")
    a(f"v_add_u32 v{t4}, s40, v{t0}")
    for w in range(8):
        a(f"s_waitcnt lgkmcnt({min(15, 5*(7-w))})")
        a(f"v_mov_b32 v{lg+w}, 0")
        for j in range(10):
            a(f"v_dot2_f32_bf16 v{lg+w}, v{q+j}, v{kb+10*w+j}, v{lg+w}")
    a("s_nop 1")
    for w in range(8):
        for j in range(5):
            a(f"ds_read_b64 {vr(kb+10*w+2*j,2)}, v{t2} offset:{(14-2*w)*480 + 320 + 8*j}")
    sc = 20 ** -0.5 * 1.4426950408889634
    a(f"s_mov_b32 s46, {f2u(sc)}")
    a(f"v_mov_b32 v{t5}, {f2u(-1e9)}")
    for w in range(8):
        a(f"v_mul_f32 v{lg+w}, s46, v{lg+w}")
        if w:
            a(f"v_cmp_gt_u32 vcc, {2*w}, v{t4}")
            a("s_nop 1")
            a(f"v_cndmask_b32 v{lg+w}, v{lg+w}, v{t5}, vcc")
    a(f"v_max3_f32 v{t6}, v{lg}, v{lg+1}, v{lg+2}")
    a(f"v_max3_f32 v{t6}, v{t6}, v{lg+3}, v{lg+4}")
    a(f"v_max3_f32 v{t6}, v{t6}, v{lg+5}, v{lg+6}")
    a(f"v_max_f32 v{t6}, v{t6}, v{lg+7}")
    for w in range(8):
        a(f"v_sub_f32 v{lg+w}, v{lg+w}, v{t6}")
        a(f"v_exp_f32 v{lg+w}, v{lg+w}")
    a("s_nop 0")
    a(f"v_add_f32 v{t7}, v{lg}, v{lg+1}")
    for w in range(2, 8):
        a(f"v_add_f32 v{t7}, v{t7}, v{lg+w}")
    a(f"v_rcp_f32 v{t7}, v{t7}")
    a("s_nop 0")
    for w in range(8):
        a(f"v_mul_f32 v{lg+w}, v{lg+w}, v{t7}")
        a(f"v_cvt_pk_bf16_f32 v{pk+2*w}, v{lg+w}, 0")
        a(f"v_lshlrev_b32 v{pk+2*w+1}, 16, v{pk+2*w}")
    for d in range(20):
        a(f"v_mov_b32 v{o+d}, 0")
    for w in range(8):
        a(f"s_waitcnt lgkmcnt({min(15, 5*(7-w))})")
        for j in range(10):
            a(f"v_dot2_f32_bf16 v{o+2*j}, v{kb+10*w+j}, v{pk+2*w}, v{o+2*j}")
            a(f"v_dot2_f32_bf16 v{o+2*j+1}, v{kb+10*w+j}, v{pk+2*w+1}, v{o+2*j+1}")
    a("s_nop 1")
    for j in range(10):
        a(f"v_cvt_pk_bf16_f32 v{q+j}, v{o+2*j}, v{o+2*j+1}")
    a(f"s_movk_i32 s46, {OHP}")
    a(f"v_mul_lo_u32 v{t4}, v{t4}, s46")
    a(f"v_add3_u32 v{t4}, v{t4}, v{t3}, s42")
    a(f"buffer_store_dwordx4 {vr(q,4)}, v{t4}, s[20:23], 0 offen")
    a(f"buffer_store_dwordx4 {vr(q+4,4)}, v{t4}, s[20:23], 0 offen offset:16")
    a(f"buffer_store_dwordx2 {vr(q+8,2)}, v{t4}, s[20:23], 0 offen offset:32")

def attention_mfma(a, R, t, v_lane, phase):
    import struct
    f2u = lambda x: struct.unpack("<I", struct.pack("<f", x))[0]
    t0, t1, t2, t3, t4, t5, t6, t7 = t
    v_m, v_g = 2, 3
    QKV = 2560
    NB = 4
    Q = 24
    K = Q + 4 * NB
    V = K + 8 * NB
    Sx = V + 8 * NB
    bias = Sx + 8 * NB
    mx = bias + 8
    sm = mx + NB
    tmp = sm + NB
    HB = 220
    aq = HB; ak = aq + 1; av = ak + 1; ast = av + 1; hp1 = ast + 1; hp2 = hp1 + 1; ast2 = hp2 + 1; u0 = ast2 + 1; u1 = u0 + 1; u2 = u1 + 1; u3 = u2 + 1; u4 = u3 + 1
    bias = HB + 12
    assert (phase == 1 or R.cur <= HB) and bias + 8 <= 256
    R.cur = max(R.cur, bias + 8)
    OIMG = 73728
    if phase == 0:
        t0, t1, t2, t3, t4 = u0, u1, u2, u3, u4
        a("s_and_b32 s66, s39, 1")
        a("s_lshr_b32 s67, s39, 1")
        a("s_mul_i32 s68, s67, 40")
        a(f"v_lshl_add_u32 v{t0}, v{v_m}, 1, s66")
        a(f"v_mul_u32_u24 v{t1}, {QP}, v{t0}")
        a(f"v_lshl_add_u32 v{t1}, v{v_g}, 4, v{t1}")
        a(f"v_add_u32 v{t1}, s68, v{t1}")
        a(f"v_add_u32 v{aq}, {QKV + 16*QP}, v{t1}")
        a(f"v_add_u32 v{ak}, 160, v{aq}")
        a(f"v_subrev_u32 v{t2}, 16, v{t0}")
        a(f"v_max_i32 v{t2}, 0, v{t2}")
        a(f"v_mul_u32_u24 v{t2}, {QP}, v{t2}")
        a(f"v_lshl_add_u32 v{t2}, v{v_g}, 4, v{t2}")
        a(f"v_add_u32 v{t2}, s68, v{t2}")
        a(f"v_add_u32 v{hp1}, {QKV + 160}, v{t2}")
        a(f"v_mul_u32_u24 v{t0}, 176, v{t0}")
        a(f"v_lshl_add_u32 v{t0}, v{v_g}, 3, v{t0}")
        a(f"s_add_u32 s69, s68, {OIMG}")
        a(f"v_add_u32 v{ast}, s69, v{t0}")
        a(f"v_mov_b32 v{t1}, 0x40000000")
        a(f"v_cmp_eq_u32 vcc, 0, v{v_g}")
        a(f"v_bfe_u32 v{t2}, v{v_lane}, 2, 2")
        a(f"v_lshl_add_u32 v{t2}, v{v_g}, 2, v{t2}")
        a(f"v_cndmask_b32 v{ast2}, v{t1}, v{ast}, vcc")
        a(f"v_lshl_add_u32 v{t2}, v{t2}, 1, s66")
        a(f"v_and_b32 v{t3}, 3, v{v_lane}")
        a(f"v_lshl_add_u32 v{t3}, v{t3}, 3, s68")
        a(f"v_mul_u32_u24 v{t4}, {QP}, v{t2}")
        a(f"v_add_u32 v{t4}, v{t4}, v{t3}")
        a(f"v_add_u32 v{av}, {QKV + 16*QP + 320}, v{t4}")
        a(f"v_subrev_u32 v{t2}, 16, v{t2}")
        a(f"v_max_i32 v{t2}, 0, v{t2}")
        a(f"v_mul_u32_u24 v{t4}, {QP}, v{t2}")
        a(f"v_add_u32 v{t4}, v{t4}, v{t3}")
        a(f"v_add_u32 v{hp2}, {QKV + 320}, v{t4}")
        a(f"v_lshlrev_b32 v{t2}, 2, v{v_g}")
        a(f"v_sub_u32 v{t2}, v{v_m}, v{t2}")
        a(f"v_mov_b32 v{t3}, {f2u(-1e9)}")
        for blk in range(2):
            for r in range(4):
                a(f"v_add_u32 v{t4}, {(16 - 16*blk - r) & 0xffffffff}, v{t2}")
                a(f"v_cmp_gt_u32 vcc, 8, v{t4}")
                a("s_nop 1")
                a(f"v_cndmask_b32 v{bias+4*blk+r}, v{t3}, 0, vcc")
        a(f"v_cmp_lt_u32 s[70:71], 1, v{v_g}")
        a(f"v_cmp_eq_u32 s[72:73], 3, v{v_g}")
        a("s_cmp_eq_u32 s37, 0")
        a("s_mov_b32 s74, 0")
        a(f"s_cmov_b32 s74, {f2u(-1e9)}")
        a(f"s_mov_b32 s75, {f2u(20 ** -0.5 * 1.4426950408889634)}")
        return
    for b in range(NB):
        for hh in range(2):
            a(f"ds_read_b64 {vr(Q+4*b+2*hh,2)}, v{aq} offset:{b*32*QP + 8*hh}")
        for hh in range(2):
            if b == 0:
                a(f"ds_read_b64 {vr(K+8*b+2*hh,2)}, v{hp1} offset:{8*hh}")
            else:
                a(f"ds_read_b64 {vr(K+8*b+2*hh,2)}, v{ak} offset:{(b-1)*32*QP + 8*hh}")
            a(f"ds_read_b64 {vr(K+8*b+4+2*hh,2)}, v{ak} offset:{b*32*QP + 8*hh}")
    for b in range(NB):
        for db in range(2):
            if b == 0:
                a(f"ds_read_b64_tr_b16 {vr(V+8*b+4*db,2)}, v{hp2} offset:{32*db}")
            else:
                a(f"ds_read_b64_tr_b16 {vr(V+8*b+4*db,2)}, v{av} offset:{(b-1)*32*QP + 32*db}")
            a(f"ds_read_b64_tr_b16 {vr(V+8*b+4*db+2,2)}, v{av} offset:{b*32*QP + 32*db}")
    a(f"s_waitcnt lgkmcnt({min(15, 4*NB)})")
    if os.environ.get("STAMPA"): a.stamp(5)
    for b in range(NB):
        a(f"v_cndmask_b32 v{Q+4*b}, v{Q+4*b}, 0, s[72:73]")
        a(f"v_cndmask_b32 v{Q+4*b+1}, v{Q+4*b+1}, 0, s[72:73]")
        a(f"v_cndmask_b32 v{Q+4*b+2}, v{Q+4*b+2}, 0, s[70:71]")
        a(f"v_cndmask_b32 v{Q+4*b+3}, v{Q+4*b+3}, 0, s[70:71]")
    a("s_nop 1")
    for b in range(NB):
        for blk in range(2):
            a(f"v_mfma_f32_16x16x32_bf16 {vr(Sx+8*b+4*blk,4)}, {vr(K+8*b+4*blk,4)}, {vr(Q+4*b,4)}, 0")
    a("s_nop 7")
    for b in range(NB):
        for e in range(8):
            a(f"v_fma_f32 v{Sx+8*b+e}, v{Sx+8*b+e}, s75, v{bias+e}")
    for e in range(4):
        a(f"v_add_f32 v{Sx+e}, s74, v{Sx+e}")
    for b in range(NB):
        s = Sx + 8 * b
        a(f"v_max3_f32 v{mx+b}, v{s}, v{s+1}, v{s+2}")
        a(f"v_max3_f32 v{tmp+b}, v{s+3}, v{s+4}, v{s+5}")
        a(f"v_max3_f32 v{mx+b}, v{mx+b}, v{s+6}, v{s+7}")
        a(f"v_max_f32 v{mx+b}, v{mx+b}, v{tmp+b}")
    for op in ("v_permlane16_swap_b32", "v_permlane32_swap_b32"):
        for b in range(NB):
            a(f"v_mov_b32 v{tmp+b}, v{mx+b}")
        for b in range(NB):
            a(f"{op} v{mx+b}, v{tmp+b}")
        for b in range(NB):
            a(f"v_max_f32 v{mx+b}, v{mx+b}, v{tmp+b}")
    for b in range(NB):
        s = Sx + 8 * b
        for e in range(8):
            a(f"v_sub_f32 v{s+e}, v{s+e}, v{mx+b}")
        for e in range(8):
            a(f"v_exp_f32 v{s+e}, v{s+e}")
    for b in range(NB):
        s = Sx + 8 * b
        a(f"v_add_f32 v{sm+b}, v{s}, v{s+1}")
        a(f"v_add_f32 v{tmp+b}, v{s+2}, v{s+3}")
        a(f"v_add_f32 v{sm+b}, v{sm+b}, v{s+4}")
        a(f"v_add_f32 v{tmp+b}, v{tmp+b}, v{s+5}")
        a(f"v_add_f32 v{sm+b}, v{sm+b}, v{s+6}")
        a(f"v_add_f32 v{tmp+b}, v{tmp+b}, v{s+7}")
        a(f"v_add_f32 v{sm+b}, v{sm+b}, v{tmp+b}")
    for op in ("v_permlane16_swap_b32", "v_permlane32_swap_b32"):
        for b in range(NB):
            a(f"v_mov_b32 v{tmp+b}, v{sm+b}")
        for b in range(NB):
            a(f"{op} v{sm+b}, v{tmp+b}")
        for b in range(NB):
            a(f"v_add_f32 v{sm+b}, v{sm+b}, v{tmp+b}")
    for b in range(NB):
        a(f"v_rcp_f32 v{sm+b}, v{sm+b}")
    for b in range(NB):
        s = Sx + 8 * b
        for e in range(8):
            a(f"v_mul_f32 v{s+e}, v{s+e}, v{sm+b}")
        for e in range(4):
            a(f"v_cvt_pk_bf16_f32 v{Q+4*b+e}, v{s+2*e}, v{s+2*e+1}")
    if os.environ.get("STAMPA"): a.stamp(6)
    a("s_waitcnt lgkmcnt(0)")
    for b in range(NB):
        for db in range(2):
            a(f"v_mfma_f32_16x16x32_bf16 {vr(Sx+8*b+4*db,4)}, {vr(V+8*b+4*db,4)}, {vr(Q+4*b,4)}, 0")
    a("s_nop 7")
    for b in range(NB):
        s = Sx + 8 * b
        a(f"v_cvt_pk_bf16_f32 v{s}, v{s}, v{s+1}")
        a(f"v_cvt_pk_bf16_f32 v{s+1}, v{s+2}, v{s+3}")
        a(f"v_cvt_pk_bf16_f32 v{s+4}, v{s+4}, v{s+5}")
        a(f"v_cvt_pk_bf16_f32 v{s+5}, v{s+6}, v{s+7}")
        a(f"ds_write_b64 v{ast}, {vr(s,2)} offset:{b*32*176}")
        a(f"ds_write_b64 v{ast2}, {vr(s+4,2)} offset:{b*32*176 + 32}")
    a("s_waitcnt lgkmcnt(0)")
    a("s_barrier")
    if os.environ.get("STAMPA"): a.stamp(7)
    store_tile(a, t, OIMG, 160, 42, 24, 176)
```

```python
import os
from asmlib import *
from gen import srd, swap23, S, D, F, KT, OHP, BIG

MBOFF = 0x1000000

def poll(a, which, t0, t1):
    L = a.newlabel("PL"); Ld = a.newlabel("PD"); Ls = a.newlabel("PS")
    a("s_cmp_lg_u32 s39, 0")
    a(f"s_cbranch_scc1 {Ls}")
    a(f"v_mov_b32 v{t0}, s56")
    a("s_mov_b64 exec, 1")
    a("s_mov_b32 s58, 200000")
    a.label(L)
    a(f"buffer_load_dword v{t1}, v{t0}, s[52:55], 0 offen offset:{which*4} sc1")
    a("s_waitcnt vmcnt(0)")
    a(f"v_cmp_gt_u32 vcc, s59, v{t1}")
    a("s_nop 4")
    a(f"s_cbranch_vccz {Ld}")
    a(f"s_sleep {os.environ.get('POLLS','2')}")
    a("s_sub_u32 s58, s58, 1")
    a("s_cmp_lg_u32 s58, 0")
    a(f"s_cbranch_scc1 {L}")
    a.label(Ld)
    a("s_mov_b64 exec, -1")
    a.label(Ls)

def notify(a, attn, t):
    t0, t1, t2, t3, t4, t5, t6, t7 = t
    a("s_load_dwordx4 s[48:51], s[0:1], 72")
    a("s_waitcnt lgkmcnt(0)")
    srd(a, 52, 48, 49, 256)
    L = a.newlabel("NI"); Ld = a.newlabel("ND")
    a(f"v_mov_b32 v{t0}, 0")
    a("s_mov_b64 exec, 1")
    a("s_mov_b32 s58, 200000")
    a("s_movk_i32 s59, 256")
    a.label(L)
    a(f"buffer_load_dword v{t1}, v{t0}, s[52:55], 0 offen sc1")
    a("s_waitcnt vmcnt(0)")
    a(f"v_cmp_gt_u32 vcc, s59, v{t1}")
    a("s_nop 4")
    a(f"s_cbranch_vccz {Ld}")
    a("s_sleep 8")
    a("s_sub_u32 s58, s58, 1")
    a("s_cmp_lg_u32 s58, 0")
    a(f"s_cbranch_scc1 {L}")
    a.label(Ld)
    a("s_mov_b64 exec, -1")
    a(f"s_add_u32 s50, s50, {MBOFF}")
    a("s_addc_u32 s51, s51, 0")
    srd(a, 52, 50, 51, 256 * 128)
    a(f"v_and_b32 v{t0}, 31, v1")
    a(f"v_mul_u32_u24 v{t1}, 205, v{t0}")
    a(f"v_lshrrev_b32 v{t1}, 11, v{t1}")
    a(f"v_mul_u32_u24 v{t2}, 10, v{t1}")
    a(f"v_sub_u32 v{t2}, v{t0}, v{t2}")
    a("s_lshl_b32 s46, s37, 2")
    a("s_mul_i32 s47, s46, 171"); a("s_lshr_b32 s47, s47, 9")
    a("s_add_u32 s46, s46, 3")
    a("s_mul_i32 s46, s46, 171"); a("s_lshr_b32 s46, s46, 9")
    a("s_min_u32 s46, s46, 13")
    a(f"v_mul_u32_u24 v{t3}, 171, v{t2}")
    a(f"v_lshrrev_b32 v{t3}, 9, v{t3}")
    a(f"v_mul_u32_u24 v{t4}, 61, v{t3}")
    a(f"v_add_u32 v{t4}, v{t4}, v{t2}")
    a(f"v_subrev_u32 v{t5}, 6, v{t2}")
    a(f"v_lshrrev_b32 v{t6}, 1, v{t5}")
    a(f"v_and_b32 v{t5}, 1, v{t5}")
    a(f"v_lshl_add_u32 v{t5}, v{t6}, 6, v{t5}")
    a(f"v_add_u32 v{t5}, 3, v{t5}")
    a(f"v_cmp_gt_u32 s[56:57], 6, v{t2}")
    a("s_nop 1")
    a(f"v_cndmask_b32 v{t7}, v{t5}, v{t4}, s[56:57]")
    a(f"v_add_u32 v{t3}, s47, v{t1}")
    a(f"v_mul_u32_u24 v{t4}, 5, v{t3}")
    a(f"v_add_u32 v{t4}, v{t4}, v{t7}")
    a(f"v_lshl_add_u32 v{t5}, v{t3}, 1, v{t7}")
    a(f"v_add_u32 v{t5}, {60 - 24 - 3}, v{t5}")
    a(f"v_cmp_gt_u32 s[48:49], 12, v{t3}")
    a("s_nop 1")
    a(f"v_cndmask_b32 v{t4}, v{t5}, v{t4}, s[48:49]")
    a("s_orn2_b64 s[48:49], s[48:49], s[56:57]")
    a(f"v_cmp_ge_u32 vcc, s46, v{t3}")
    a("s_and_b64 s[48:49], s[48:49], vcc")
    a(f"v_cmp_gt_u32 vcc, 30, v{t0}")
    a("s_and_b64 s[48:49], s[48:49], vcc")
    a(f"v_add_u32 v{t4}, 128, v{t4}")
    a("s_lshl_b32 s46, s37, 1")
    a("s_sub_u32 s46, s46, 18")
    a(f"v_add_u32 v{t3}, s46, v{t1}")
    a(f"v_mul_u32_u24 v{t5}, 3, v{t3}")
    a(f"v_add_u32 v{t5}, v{t5}, v{t7}")
    a(f"v_mul_u32_u24 v{t6}, 5, v{t3}")
    a(f"v_add_u32 v{t6}, v{t6}, v{t7}")
    a(f"v_subrev_u32 v{t6}, 6, v{t6}")
    a(f"v_cmp_gt_u32 s[50:51], 3, v{t3}")
    a("s_nop 1")
    a(f"v_cndmask_b32 v{t5}, v{t6}, v{t5}, s[50:51]")
    a("s_orn2_b64 s[50:51], s[56:57], s[50:51]")
    a(f"v_cmp_gt_u32 vcc, 2, v{t1}")
    a("s_and_b64 s[50:51], s[50:51], vcc")
    a("s_cmp_ge_u32 s37, 9")
    a("s_cselect_b64 s[50:51], s[50:51], 0")
    a("s_mov_b32 s49, s51")
    a(f"v_cmp_gt_u32 vcc, 32, v1")
    a("s_nop 1")
    a(f"v_cndmask_b32 v{t4}, v{t5}, v{t4}, vcc")
    a(f"v_lshlrev_b32 v{t4}, 7, v{t4}")
    a(f"v_mov_b32 v{t1}, 1")

def notify_fire(a, attn, t):
    t0, t1, t2, t3, t4, t5, t6, t7 = t
    a("s_mov_b64 exec, s[48:49]")
    a(f"buffer_atomic_add v{t1}, v{t4}, s[52:55], 0 offen offset:{4 if attn else 0}")
    a("s_mov_b64 exec, -1")

def k2_body(a, MT):
    from gen_k1 import interleave
    NRB = MT // 16
    RW = NRB // 2
    NAI = MT // 32
    NCH = 34
    WOFF = MT * 128
    STG = WOFF + 8192
    NST = min(9, 151552 // STG)
    order = list(range(10, 34)) + list(range(10))
    a.vm_reset()
    a.vm.append("st")
    a("s_load_dwordx2 s[4:5], s[0:1], 0")
    a("s_load_dwordx2 s[6:7], s[0:1], 16")
    a("s_load_dwordx2 s[28:29], s[0:1], 48")
    a("s_load_dwordx2 s[30:31], s[0:1], 56")
    a("s_load_dwordx4 s[32:35], s[0:1], 64")
    a("s_load_dwordx2 s[60:61], s[0:1], 80")
    a("s_and_b32 s36, s2, 7")
    a("s_lshl_b32 s36, s36, 4")
    a("s_lshr_b32 s46, s2, 4")
    a("s_add_u32 s36, s36, s46")
    a("s_and_b32 s62, s36, 63")
    a("s_lshr_b32 s63, s36, 6")
    if MT == 96:
        a("s_mul_i32 s46, s62, 205"); a("s_lshr_b32 s46, s46, 10")
        a("s_mul_i32 s47, s46, 5"); a("s_sub_u32 s47, s62, s47")
        a("s_sub_u32 s48, s62, 60")
        a("s_lshr_b32 s49, s48, 1"); a("s_add_u32 s49, s49, 12")
        a("s_and_b32 s48, s48, 1"); a("s_add_u32 s48, s48, 3")
        a("s_cmp_lt_u32 s62, 60")
        a("s_cselect_b32 s46, s46, s49")
        a("s_cselect_b32 s47, s47, s48")
        a("s_mul_i32 s40, s46, 96")
    else:
        a("s_mul_i32 s46, s62, 171"); a("s_lshr_b32 s46, s46, 9")
        a("s_mul_i32 s47, s46, 3"); a("s_sub_u32 s47, s62, s47")
        a("s_sub_u32 s48, s62, 9")
        a("s_mul_i32 s49, s48, 205"); a("s_lshr_b32 s49, s49, 10")
        a("s_mul_i32 s50, s49, 5"); a("s_sub_u32 s48, s48, s50")
        a("s_add_u32 s49, s49, 3")
        a("s_cmp_lt_u32 s62, 9")
        a("s_cselect_b32 s46, s46, s49")
        a("s_cselect_b32 s47, s47, s48")
        a("s_lshl_b32 s40, s46, 6")
        a("s_add_u32 s40, s40, 1152")
    a("s_mul_i32 s48, s63, 3"); a("s_add_u32 s48, s48, s47")
    a("s_lshl_b32 s49, s63, 1"); a("s_add_u32 s49, s49, s47"); a("s_add_u32 s49, s49, 3")
    a("s_cmp_lt_u32 s47, 3")
    a("s_cselect_b32 s47, s48, s49")
    a("s_lshl_b32 s42, s47, 7")
    a("s_lshr_b32 s56, s40, 7")
    a(f"s_add_u32 s57, s40, {MT-1}")
    a("s_lshr_b32 s57, s57, 7")
    a("s_sub_u32 s59, s57, s56")
    a("s_lshl_b32 s59, s59, 3")
    a("s_add_u32 s59, s59, 8")
    a(f"s_add_u32 s56, s36, {128 if MT == 96 else 0}")
    a("s_lshl_b32 s56, s56, 7")
    R = RegAlloc(4, 256)
    v_lane, v_m, v_g = 1, 2, 3
    t0 = R.alloc(1); t1 = R.alloc(1); t2 = R.alloc(1); t3 = R.alloc(1)
    v_doff = R.alloc(NAI + 2)
    v_ab = R.alloc(2); v_wb = R.alloc(2)
    v_ac = R.alloc(2); v_wc = R.alloc(2)
    v_eoff = R.alloc(RW); v_boff = R.alloc(1)
    v_x = R.alloc(4 * RW, 2); v_b2 = R.alloc(4, 2)
    acc = R.alloc(8 * RW, 4)
    Af = R.alloc(2 * 8 * RW, 4)
    Wf = R.alloc(2 * 16, 4)
    a("s_and_b32 s43, s39, 1")
    a("s_lshr_b32 s44, s39, 1")
    a("s_lshl_b32 s45, s39, 3")
    a(f"v_lshrrev_b32 v{t0}, 3, v{v_lane}")
    a(f"v_add_u32 v{t0}, s45, v{t0}")
    a(f"v_and_b32 v{t1}, 7, v{v_lane}")
    a(f"v_and_b32 v{t2}, 7, v{t0}")
    a(f"v_xor_b32 v{t1}, v{t1}, v{t2}")
    a(f"v_lshlrev_b32 v{t1}, 4, v{t1}")
    a(f"s_movk_i32 s41, {OHP}")
    for i in range(NAI):
        a(f"v_add_u32 v{t2}, {32*i}, v{t0}")
        a(f"v_add_u32 v{t2}, s40, v{t2}")
        a(f"v_mul_lo_u32 v{t2}, v{t2}, s41")
        a(f"v_add_u32 v{v_doff+i}, v{t2}, v{t1}")
    for i in range(2):
        d = v_doff + NAI + i
        a(f"v_add_u32 v{t2}, {32*i}, v{t0}")
        a(f"v_bfe_u32 v{t1}, v{t2}, 1, 2")
        a(f"v_bfe_u32 v{t3}, v{v_lane}, 1, 2")
        a(f"v_xor_b32 v{t1}, v{t1}, v{t3}")
        a(f"v_and_b32 v{t3}, 1, v{v_lane}")
        a(f"v_lshl_or_b32 v{t1}, v{t1}, 1, v{t3}")
        swap23(a, d, t2, t3)
        a(f"v_mul_u32_u24 v{d}, 1280, v{d}")
        a(f"v_lshl_add_u32 v{d}, v{t1}, 4, v{d}")
        a(f"v_add_u32 v{d}, s42, v{d}")
    a(f"s_mul_i32 s46, s43, {RW*16*128}")
    a(f"v_and_b32 v{t0}, 7, v{v_m}")
    a(f"v_lshl_add_u32 v{t2}, v{v_m}, 7, s46")
    for hh in range(2):
        a(f"v_add_u32 v{t1}, {4*hh}, v{v_g}")
        a(f"v_xor_b32 v{t1}, v{t1}, v{t0}")
        a(f"v_lshl_add_u32 v{v_ab+hh}, v{t1}, 4, v{t2}")
    a(f"v_lshrrev_b32 v{t0}, 1, v{v_g}")
    a(f"v_lshlrev_b32 v{t0}, 4, v{t0}")
    a(f"v_and_b32 v{t1}, 1, v{v_g}")
    a(f"v_lshl_add_u32 v{t0}, v{t1}, 2, v{t0}")
    a(f"v_bfe_u32 v{t1}, v{v_lane}, 2, 2")
    a(f"v_add_u32 v{t0}, v{t0}, v{t1}")
    a(f"v_bfe_u32 v{t1}, v{t0}, 1, 2")
    a(f"v_lshlrev_b32 v{t0}, 7, v{t0}")
    a(f"v_and_b32 v{t2}, 3, v{v_lane}")
    a(f"v_lshl_add_u32 v{t0}, v{t2}, 3, v{t0}")
    a(f"v_add_u32 v{t0}, {WOFF}, v{t0}")
    a("s_lshl_b32 s46, s44, 1")
    for nb in range(2):
        a(f"s_add_u32 s47, s46, {nb}")
        a(f"v_xor_b32 v{t2}, s47, v{t1}")
        a(f"v_lshl_add_u32 v{v_wb+nb}, v{t2}, 5, v{t0}")
    a("s_lshl_b32 s46, s44, 6")
    a("s_add_u32 s46, s46, s42")
    a(f"v_lshl_add_u32 v{v_boff}, v{v_g}, 3, s46")
    a(f"s_mul_i32 s47, s43, {RW*16}")
    a("s_add_u32 s47, s47, s40")
    for mb in range(RW):
        a(f"v_add_u32 v{t0}, s47, v{v_m}")
        if mb: a(f"v_add_u32 v{t0}, {16*mb}, v{t0}")
        a(f"v_mul_u32_u24 v{t0}, 1280, v{t0}")
        a(f"v_add_u32 v{v_eoff+mb}, v{t0}, v{v_boff}")
    for i in range(8 * RW):
        a(f"v_mov_b32 v{acc+i}, 0")
    a("s_lshl_b32 s45, s39, 10")
    a("s_waitcnt lgkmcnt(0)")
    srd(a, 8, 60, 61, S * OHP)
    srd(a, 12, 6, 7, D * 1280)
    srd(a, 48, 28, 29, F * 1280)
    srd(a, 16, 4, 5, S * D * 2)
    srd(a, 20, 32, 33, S * D * 2)
    srd(a, 24, 30, 31, D * 2)
    a(f"s_add_u32 s60, s60, {MBOFF}")
    a("s_addc_u32 s61, s61, 0")
    srd(a, 52, 60, 61, 256 * 128)
    LDF = os.environ.get("OHLD", "sc1")

    def issue(p, parts="AW"):
        c = order[p]
        st = (p % NST) * STG
        tag = ("D", p)
        if "A" in parts:
            a(f"s_movk_i32 s46, {c*128}")
            for i in range(NAI):
                a(f"s_add_u32 m0, s45, {st + i*4096}")
                a("s_nop 0")
                a.vmem(f"buffer_load_dwordx4 v{v_doff+i}, s[8:11], s46 offen {LDF} lds", tag)
        if "W" in parts:
            wsrd, cc = ("s[12:15]", c) if c < 10 else ("s[48:51]", c - 10)
            a(f"s_mov_b32 s46, {cc*64*1280}")
            for i in range(2):
                a(f"s_add_u32 m0, s45, {st + WOFF + i*4096}")
                a("s_nop 0")
                a.vmem(f"buffer_load_dwordx4 v{v_doff+NAI+i}, {wsrd}, s46 offen lds", tag)
    def setaddr(p):
        st = (p % NST) * STG
        for j in range(2):
            a(f"v_add_u32 v{v_ac+j}, {st}, v{v_ab+j}")
            a(f"v_add_u32 v{v_wc+j}, {st}, v{v_wb+j}")
    def reads(b):
        for kh in range(2):
            for nb in range(2):
                for q in range(2):
                    a(f"ds_read_b64_tr_b16 {vr(Wf+16*b+8*kh+4*nb+2*q,2)}, v{v_wc+nb} offset:{q*1024+kh*4096}")
            for mb in range(RW):
                a(f"ds_read_b128 {vr(Af+8*RW*b+4*RW*kh+4*mb,4)}, v{v_ac+kh} offset:{mb*2048}")
    def mfmas(b, kh):
        for nb in range(2):
            for mb in range(RW):
                c = acc + 4 * (nb * RW + mb)
                a(f"v_mfma_f32_16x16x32_bf16 {vr(c,4)}, {vr(Wf+16*b+8*kh+4*nb,4)}, {vr(Af+8*RW*b+4*RW*kh+4*mb,4)}, {vr(c,4)}")
    PRE = int(os.environ.get("F_PRE", 4)); RAMP = 3
    for p in range(PRE):
        issue(p, "W")
    for mb in range(RW):
        for nb in range(2):
            a.vmem(f"buffer_load_dwordx2 {vr(v_x+4*mb+2*nb,2)}, v{v_eoff+mb}, s[16:19], 0 offen offset:{32*nb}", "xb")
    for nb in range(2):
        a.vmem(f"buffer_load_dwordx2 {vr(v_b2+2*nb,2)}, v{v_boff}, s[24:27], 0 offen offset:{32*nb}", "xb")
    a.vm_wait("st")
    a("s_barrier")
    a.trace_mark(1)
    poll(a, 0, t0, t1)
    if os.environ.get("POLLBOTH"):
        poll(a, 1, t0, t1)
    a("s_barrier")
    a.stamp(3)
    a.trace_mark(2)
    nxt = [PRE]
    polled = [bool(os.environ.get('POLLBOTH'))]
    def issue_next(lim):
        if nxt[0] < min(lim, NCH):
            if order[nxt[0]] < 10 and not polled[0]:
                return
            issue(nxt[0]); nxt[0] += 1
    for p in range(PRE):
        issue(p, "A")
    a.vm_wait(("D", 0))
    a("s_barrier")
    a.stamp(4)
    setaddr(0)
    reads(0)
    for p in range(NCH):
        a.comment(f"k2 pos {p}")
        b = p & 1
        side = []
        if p + 1 < NCH:
            a.vm_wait(("D", p + 1), "lgkmcnt(0)")
            if not polled[0] and nxt[0] < NCH and order[nxt[0]] < 10 and nxt[0] < p + NST:
                a.stamp(5)
                poll(a, 1, t0, t1)
                a.stamp(6)
                a.trace_mark(3)
                polled[0] = True
            a("s_barrier")
            a.capture()
            setaddr(p + 1)
            reads(1 - b)
            for _ in range(RAMP):
                issue_next(p + NST)
            side = a.release()
        else:
            a("s_waitcnt lgkmcnt(0)")
        a.capture()
        mfmas(b, 0)
        mfmas(b, 1)
        mf = a.release()
        interleave(a, mf, side)
    a("s_waitcnt vmcnt(0)")
    a("s_nop 7")
    for nb in range(2):
        for mb in range(RW):
            c = acc + 4 * (nb * RW + mb)
            for h in range(2):
                a(f"v_lshlrev_b32 v{t0}, 16, v{v_x+4*mb+2*nb+h}")
                a(f"v_and_b32 v{t1}, 0xffff0000, v{v_x+4*mb+2*nb+h}")
                a(f"v_lshlrev_b32 v{t2}, 16, v{v_b2+2*nb+h}")
                a(f"v_and_b32 v{t3}, 0xffff0000, v{v_b2+2*nb+h}")
                a(f"v_add_f32 v{t0}, v{t0}, v{t2}")
                a(f"v_add_f32 v{t1}, v{t1}, v{t3}")
                a(f"v_add_f32 v{c+2*h}, v{c+2*h}, v{t0}")
                a(f"v_add_f32 v{c+2*h+1}, v{c+2*h+1}, v{t1}")
            a(f"v_cvt_pk_bf16_f32 v{c}, v{c}, v{c+1}")
            a(f"v_cvt_pk_bf16_f32 v{c+1}, v{c+2}, v{c+3}")
            a(f"buffer_store_dwordx2 {vr(c,2)}, v{v_eoff+mb}, s[20:23], 0 offen offset:{32*nb}")
    return R.cur, NST * STG
```
